```python
import torch

def _softmax(x, axis=-1):
    return torch.softmax(x, dim=axis)

def _gelu(x):
    return torch.nn.functional.gelu(x, approximate='tanh')

def _silu(x):
    return torch.nn.functional.silu(x)

def _sigmoid(x):
    return torch.sigmoid(x)

def _layernorm(x, axis=-1, eps=1e-05):
    m = x.mean(dim=axis, keepdim=True)
    v = x.var(dim=axis, keepdim=True, unbiased=False)
    return (x - m) / torch.sqrt(v + eps)

def _scatter_add(tgt, idx, src, axis=0):
    return tgt.clone().index_add_(axis, idx, src)

def _segment_sum(src, seg, n):
    out = torch.zeros((n,) + src.shape[1:], dtype=src.dtype)
    return out.index_add_(0, seg, src)

def _pad(x, pw):
    flat = tuple((v for pair in reversed(pw) for v in pair))
    return torch.nn.functional.pad(x, flat)
kernel_name = 'standalone__mixer_gmlp__prompt'

def setup_inputs():

    _w = lambda a: (lambda t: t.to(torch.bfloat16) if t.is_floating_point() else t)(torch.as_tensor(a))
    B, S, D, F = (1, 2048, 448, 1792)
    Fh = F // 2
    return {'x': _w((lambda *s: torch.randn(*s, dtype=torch.bfloat16) * 0.05)(B, S, D)), 'w_in': _w((lambda *s: torch.randn(*s, dtype=torch.bfloat16) * 0.4)(D, 2 * Fh)), 'w_sp': _w(0.01 * (lambda *s: torch.randn(*s, dtype=torch.bfloat16) * 0.4)(S, S)), 'b_sp': _w(1.0 + 0.01 * (lambda *s: torch.randn(*s, dtype=torch.bfloat16) * 0.05)(S)), 'w_out': _w((lambda *s: torch.randn(*s, dtype=torch.bfloat16) * 0.05)(Fh, D))}

def reference(x, w_in, w_sp, b_sp, w_out):
    B, S, D = x.shape
    F = w_in.shape[-1]
    Fh = F // 2
    z = _gelu(torch.einsum('bsd,df->bsf', x, w_in))
    z1 = z[..., :Fh].clone()
    z2 = _layernorm(z[..., Fh:], axis=-1)
    g = torch.einsum('ts,bsf->btf', w_sp, z2) + b_sp[None, :, None]
    return torch.einsum('bsf,fd->bsd', z1 * g, w_out)
```

```python
import math, struct, sys

S, D, F, FH = 2048, 448, 1792, 896
WS_Z1, WS_Z2R, WS_Z2N, WS_H = 0x0, 0x400000, 0x800000, 0xC00000
ZBYTES = S * FH * 2

def f32bits(x):
    return struct.unpack('<I', struct.pack('<f', x))[0]

class Asm:
    def __init__(self):
        self.l = []
    def __call__(self, s):
        for line in s.strip('\n').split('\n'):
            self.l.append('    ' + line.strip())
    def label(self, s):
        self.l.append(s + ':')
    def raw(self, s):
        self.l.append(s)
    def text(self):
        return '\n'.join(self.l) + '\n'

def vr(b, n):
    return f'v[{b}:{b+n-1}]'

def srd(a, sd, sbase, nbytes, off=0):
    if off:
        a(f's_add_u32 s{sd}, s{sbase}, {off:#x}')
        a(f's_addc_u32 s{sd+1}, s{sbase+1}, 0')
        a(f's_and_b32 s{sd+1}, s{sd+1}, 0xffff')
    else:
        a(f's_mov_b32 s{sd}, s{sbase}')
        a(f's_and_b32 s{sd+1}, s{sbase+1}, 0xffff')
    a(f's_mov_b32 s{sd+2}, {nbytes:#x}')
    a(f's_mov_b32 s{sd+3}, 0x00020000')

def kernel_head(a, name, nwg):
    a.raw(f'.globl {name}')
    a.raw('.p2align 8')
    a.raw(f'.type {name},@function')
    a.label(name)
    a(f's_cmp_ge_u32 s2, {nwg}')
    a(f's_cbranch_scc1 {name}_done')
    a('s_load_dwordx16 s[16:31], s[0:1], 0')

def kernel_tail(a, name):
    a.label(f'{name}_done')
    a('s_endpgm')

def descriptor(name, vgpr, sgpr=96):
    acc = (vgpr + 3) // 4 * 4
    return f'''.amdhsa_kernel {name}
  .amdhsa_next_free_vgpr {vgpr}
  .amdhsa_next_free_sgpr {sgpr}
  .amdhsa_accum_offset {acc}
  .amdhsa_group_segment_fixed_size 0
  .amdhsa_kernarg_size 64
  .amdhsa_user_sgpr_count 2
  .amdhsa_user_sgpr_kernarg_segment_ptr 1
  .amdhsa_system_sgpr_workgroup_id_x 1
.end_amdhsa_kernel
'''

def lane_setup(a):
    a('v_lshrrev_b32 v1, 6, v0')
    a('v_and_b32 v0, 63, v0')
    a('v_readfirstlane_b32 s8, v1')
    a('v_and_b32 v1, 15, v0')
    a('v_lshrrev_b32 v2, 4, v0')

def dma224_offsets(a, vdst, stride, s_colbase, t0, t1, t2):
    for c in range(448):
        assert (c * 4682) >> 16 == c // 14
    for n in range(7):
        a(f'v_add_u32 v{t0}, {64*n}, v0')
        a(f'v_mul_u32_u24 v{t1}, 4682, v{t0}')
        a(f'v_lshrrev_b32 v{t1}, 16, v{t1}')
        a(f'v_mul_u32_u24 v{t2}, 14, v{t1}')
        a(f'v_sub_u32 v{t0}, v{t0}, v{t2}')
        a(f'v_lshlrev_b32 v{t0}, 4, v{t0}')
        a(f'v_bfe_u32 v{t2}, v{t1}, 2, 2')
        a(f'v_lshlrev_b32 v{t2}, 3, v{t2}')
        a(f'v_and_b32 v{vdst+n}, 3, v{t1}')
        a(f'v_add_u32 v{t2}, v{t2}, v{vdst+n}')
        a(f'v_lshrrev_b32 v{t1}, 4, v{t1}')
        a(f'v_lshl_add_u32 v{t2}, v{t1}, 2, v{t2}')
        a(f'v_mul_u32_u24 v{t2}, {stride}, v{t2}')
        a(f'v_add3_u32 v{vdst+n}, v{t2}, v{t0}, s{s_colbase}')

GC0 = -2.0 * math.log2(math.e) * math.sqrt(2.0 / math.pi)
GC1 = GC0 * 0.044715

def gen_k1(a):
    name = 'k1_kernel'
    kernel_head(a, name, 256)
    lane_setup(a)
    a('''
    s_and_b32 s3, s2, 7
    s_lshr_b32 s4, s2, 3
    s_and_b32 s5, s3, 3
    s_lshl_b32 s5, s5, 2
    s_and_b32 s6, s4, 3
    s_add_u32 s5, s5, s6          ; rb 0..15
    s_lshr_b32 s6, s3, 2
    s_lshl_b32 s6, s6, 3
    s_lshr_b32 s7, s4, 2
    s_add_u32 s6, s6, s7          ; cb 0..15
    s_mul_i32 s9, s6, 224
    s_lshl_b32 s10, s5, 7
    s_lshl_b32 s11, s8, 5
    s_add_u32 s10, s10, s11
    s_movk_i32 s12, 14336
    s_movk_i32 s13, 28672
    ''')
    VA, VB, VB2, VO, VC0 = 3, 4, 5, 6, 7
    FR, AV, ACC, DOFF = 8, 64, 176, 232
    a(f'v_add_u32 v{VA}, s10, v1')
    a(f'v_mul_u32_u24 v{VO}, 1792, v{VA}')
    a(f'v_mul_u32_u24 v{VA}, 896, v{VA}')
    a(f'v_lshl_add_u32 v{VA}, v2, 4, v{VA}')
    a('s_and_b32 s14, s6, 7')
    a('s_mul_i32 s14, s14, 224')
    a('s_lshr_b32 s15, s6, 3')
    a('s_lshl_b32 s15, s15, 22')
    a('s_add_u32 s14, s14, s15')
    a(f'v_lshl_add_u32 v{VO}, v2, 3, v{VO}')
    a(f'v_add_u32 v{VO}, s14, v{VO}')
    a(f'v_lshrrev_b32 v{VB}, 2, v1')
    a(f'v_lshl_add_u32 v{VB}, v2, 2, v{VB}')
    a(f'v_mul_u32_u24 v{VB}, 224, v{VB}')
    a(f'v_and_b32 v{VB2}, 3, v1')
    a(f'v_lshl_add_u32 v{VB}, v{VB2}, 3, v{VB}')
    a(f'v_add_u32 v{VB2}, 57344, v{VB}')
    dma224_offsets(a, DOFF, 3584, 9, FR, FR+1, FR+2)
    a(f'v_mov_b32 v{VC0}, {f32bits(GC0):#x}')
    a(f's_mov_b32 s48, {f32bits(GC1):#x}')
    for i in range(56):
        a(f'v_mov_b32 v{ACC+i}, 0')
    a('s_waitcnt lgkmcnt(0)')
    srd(a, 32, 16, S*D*2)
    srd(a, 36, 18, D*F*2)
    srd(a, 40, 30, 0x800000)
    def dma_group(q):
        a(f's_add_u32 s50, s8, {4*q}')
        a('s_mul_i32 s51, s50, 114688')
        a('s_mul_i32 s52, s50, 7168')
        for n in range(7):
            a(f's_add_u32 m0, s52, {n*1024}')
            a('s_nop 0')
            a(f'buffer_load_dwordx4 v{DOFF+n}, s[36:39], s51 offen lds')
    def a_loads(k0, k1):
        for ks in range(k0, k1):
            a(f'buffer_load_dwordx4 {vr(AV+ks*8,4)}, v{VA}, s[32:35], 0 offen offset:{ks*64}')
            a(f'buffer_load_dwordx4 {vr(AV+ks*8+4,4)}, v{VA}, s[32:35], s12 offen offset:{ks*64}')
    dma_group(0); a_loads(0, 4)
    dma_group(1); a_loads(4, 8)
    dma_group(2); a_loads(8, 14)
    a('s_cmp_ge_u32 s8, 2')
    a('s_cbranch_scc1 k1_skip_q3')
    dma_group(3)
    a.label('k1_skip_q3')
    def frag_reads(ks, buf):
        base, off = (VB, ks*7168) if ks < 8 else (VB2, (ks-8)*7168)
        for j in range(7):
            for h in range(2):
                a(f'ds_read_b64_tr_b16 {vr(FR+buf*28+j*4+h*2,2)}, v{base} offset:{off+h*3584+j*32}')
    def mfmas(ks, buf):
        for j in range(7):
            for mt in range(2):
                c = ACC + (j*2+mt)*4
                a(f'v_mfma_f32_16x16x32_bf16 {vr(c,4)}, {vr(FR+buf*28+j*4,4)}, {vr(AV+ks*8+mt*4,4)}, {vr(c,4)}')
    for (k0, k1, wcnt) in ((0, 8, 19), (8, 14, 0)):
        a(f's_waitcnt vmcnt({wcnt})')
        a('s_barrier')
        frag_reads(k0, k0 & 1)
        for ks in range(k0, k1):
            if ks + 1 < k1:
                frag_reads(ks+1, (ks+1) & 1)
                a('s_waitcnt lgkmcnt(14)')
            else:
                a('s_waitcnt lgkmcnt(0)')
            mfmas(ks, ks & 1)
    a('s_nop 7')
    a('s_nop 7')
    T = FR
    for j in range(7):
        for mt in range(2):
            c = ACC + (j*2+mt)*4
            u = [T+0, T+1, T+2, T+3]
            w = [T+4, T+5, T+6, T+7]
            p = T+8 + ((j*2+mt) & 3)*2
            a(f'v_cvt_pk_bf16_f32 v{w[0]}, v{c}, v{c+1}')
            a(f'v_cvt_pk_bf16_f32 v{w[1]}, v{c+2}, v{c+3}')
            a(f'v_lshlrev_b32 v{u[0]}, 16, v{w[0]}')
            a(f'v_and_b32 v{u[1]}, 0xffff0000, v{w[0]}')
            a(f'v_lshlrev_b32 v{u[2]}, 16, v{w[1]}')
            a(f'v_and_b32 v{u[3]}, 0xffff0000, v{w[1]}')
            for i in range(4): a(f'v_mul_f32 v{w[i]}, v{u[i]}, v{u[i]}')
            for i in range(4): a(f'v_fma_f32 v{w[i]}, v{w[i]}, s48, v{VC0}')
            for i in range(4): a(f'v_mul_f32 v{w[i]}, v{w[i]}, v{u[i]}')
            for i in range(4): a(f'v_exp_f32 v{w[i]}, v{w[i]}')
            for i in range(4): a(f'v_add_f32 v{w[i]}, 1.0, v{w[i]}')
            for i in range(4): a(f'v_rcp_f32 v{w[i]}, v{w[i]}')
            for i in range(4): a(f'v_mul_f32 v{w[i]}, v{w[i]}, v{u[i]}')
            a(f'v_cvt_pk_bf16_f32 v{p}, v{w[0]}, v{w[1]}')
            a(f'v_cvt_pk_bf16_f32 v{p+1}, v{w[2]}, v{w[3]}')
            so = 's13' if mt else '0'
            a(f'buffer_store_dwordx2 {vr(p,2)}, v{VO}, s[40:43], {so} offen offset:{j*32}')
    kernel_tail(a, name)
    return descriptor(name, 240)

def dpp_sum(a, v):
    for op in ('row_shr:1', 'row_shr:2', 'row_shr:4', 'row_shr:8'):
        a('s_nop 1')
        a(f'v_add_f32_dpp v{v}, v{v}, v{v} {op} row_mask:0xf bank_mask:0xf bound_ctrl:0')
    a('s_nop 1')
    a(f'v_add_f32_dpp v{v}, v{v}, v{v} row_bcast:15 row_mask:0xa bank_mask:0xf')
    a('s_nop 1')
    a(f'v_add_f32_dpp v{v}, v{v}, v{v} row_bcast:31 row_mask:0xc bank_mask:0xf')
    a('s_nop 1')

def rbf(a, v):
    a(f'v_cvt_pk_bf16_f32 v{v}, v{v}, v{v}')
    a(f'v_lshlrev_b32 v{v}, 16, v{v}')

def gen_k2(a):
    name = 'k2_kernel'
    kernel_head(a, name, 512)
    lane_setup(a)
    a('''
    s_lshl_b32 s3, s2, 2
    s_add_u32 s3, s3, s8
    s_mul_i32 s3, s3, 1792
    v_lshlrev_b32 v3, 4, v0
    v_add_u32 v3, s3, v3
    v_mov_b32 v12, 0
    v_mov_b32 v13, 0
    v_mov_b32 v14, 0
    v_mov_b32 v15, 0
    v_cmp_gt_u32 s[52:53], 48, v0
    s_waitcnt lgkmcnt(0)
    ''')
    srd(a, 32, 30, ZBYTES, WS_Z2R)
    srd(a, 36, 30, ZBYTES, WS_Z2N)
    a('''
    buffer_load_dwordx4 v[8:11], v3, s[32:35], 0 offen
    s_mov_b64 exec, s[52:53]
    buffer_load_dwordx4 v[12:15], v3, s[32:35], 0 offen offset:1024
    s_mov_b64 exec, -1
    s_waitcnt vmcnt(0)
    ''')
    X = 16
    for i in range(8):
        a(f'v_lshlrev_b32 v{X+2*i}, 16, v{8+i}')
        a(f'v_and_b32 v{X+2*i+1}, 0xffff0000, v{8+i}')
    a(f'v_add_f32 v4, v{X}, v{X+1}')
    for i in range(2, 16):
        a(f'v_add_f32 v4, v4, v{X+i}')
    dpp_sum(a, 4)
    a('v_readlane_b32 s4, v4, 63')
    a(f's_mov_b32 s5, {f32bits(1.0/896):#x}')
    a('s_nop 1')
    a('v_mov_b32 v5, s4')
    a('v_mul_f32 v5, s5, v5')
    Y = 32
    for i in range(16):
        a(f'v_sub_f32 v{Y+i}, v{X+i}, v5')
    a(f'v_mul_f32 v4, v{Y}, v{Y}')
    for i in range(1, 8):
        a(f'v_fmac_f32 v4, v{Y+i}, v{Y+i}')
    a(f'v_mul_f32 v6, v{Y+8}, v{Y+8}')
    for i in range(9, 16):
        a(f'v_fmac_f32 v6, v{Y+i}, v{Y+i}')
    a('v_cndmask_b32 v6, 0, v6, s[52:53]')
    a('v_add_f32 v4, v4, v6')
    dpp_sum(a, 4)
    a('v_readlane_b32 s4, v4, 63')
    a('s_nop 1')
    a('v_mov_b32 v6, s4')
    a('v_mul_f32 v6, s5, v6')
    rbf(a, 5)
    rbf(a, 6)
    a(f'v_add_f32 v6, {f32bits(1e-5):#x}, v6')
    rbf(a, 6)
    a('v_sqrt_f32 v6, v6')
    a('s_nop 0')
    rbf(a, 6)
    a('v_rcp_f32 v7, v6')
    for i in range(16):
        a(f'v_sub_f32 v{Y+i}, v{X+i}, v5')
    for i in range(0, 16, 2):
        a(f'v_cvt_pk_bf16_f32 v{X+i}, v{Y+i}, v{Y+i+1}')
        a(f'v_and_b32 v{Y+i+1}, 0xffff0000, v{X+i}')
        a(f'v_lshlrev_b32 v{Y+i}, 16, v{X+i}')
    for i in range(16):
        a(f'v_mul_f32 v{X+i}, v{Y+i}, v7')
        a(f'v_fma_f32 v{Y+i}, -v{X+i}, v6, v{Y+i}')
        a(f'v_fmac_f32 v{X+i}, v{Y+i}, v7')
    for i in range(8):
        a(f'v_cvt_pk_bf16_f32 v{8+i}, v{X+2*i}, v{X+2*i+1}')
    a('''
    buffer_store_dwordx4 v[8:11], v3, s[36:39], 0 offen
    s_mov_b64 exec, s[52:53]
    buffer_store_dwordx4 v[12:15], v3, s[36:39], 0 offen offset:1024
    s_mov_b64 exec, -1
    ''')
    kernel_tail(a, name)
    return descriptor(name, 48)

def gen_k3(a):
    name = 'k3_kernel'
    kernel_head(a, name, 256)
    lane_setup(a)
    a('''
    s_and_b32 s3, s2, 7
    s_lshr_b32 s4, s2, 3
    s_and_b32 s5, s3, 3
    s_lshl_b32 s5, s5, 3
    s_and_b32 s6, s4, 7
    s_add_u32 s5, s5, s6          ; tb 0..31
    s_lshr_b32 s6, s3, 2
    s_lshl_b32 s6, s6, 2
    s_lshr_b32 s7, s4, 3
    s_add_u32 s6, s6, s7          ; fb 0..7
    s_mul_i32 s9, s6, 224
    s_lshl_b32 s10, s5, 6
    s_lshl_b32 s11, s8, 4
    s_add_u32 s10, s10, s11
    s_mul_i32 s12, s8, 57344
    s_mul_i32 s13, s8, 7168
    ''')
    VA, VB0, VB1, VB2, VO, VBI = 3, 4, 5, 6, 7, 179
    FR, AV, ACC, DOFF, Z1 = 8, 64, 144, 171+1, 180
    NST, DEPTH, NSLOT = 16, 4, 5
    a(f'v_add_u32 v{VA}, s10, v1')
    a(f'v_lshlrev_b32 v{VBI}, 1, v{VA}')
    a(f'v_mul_u32_u24 v{VO}, 1792, v{VA}')
    a(f'v_lshlrev_b32 v{VA}, 12, v{VA}')
    a(f'v_lshl_add_u32 v{VA}, v2, 4, v{VA}')
    a(f'v_lshl_add_u32 v{VO}, v2, 3, v{VO}')
    a(f'v_add_u32 v{VO}, s9, v{VO}')
    a(f'v_lshrrev_b32 v{VB0}, 2, v1')
    a(f'v_lshl_add_u32 v{VB0}, v2, 2, v{VB0}')
    a(f'v_mul_u32_u24 v{VB0}, 224, v{VB0}')
    a(f'v_and_b32 v{VB1}, 3, v1')
    a(f'v_lshl_add_u32 v{VB0}, v{VB1}, 3, v{VB0}')
    a(f'v_add_u32 v{VB1}, 57344, v{VB0}')
    a(f'v_add_u32 v{VB2}, 114688, v{VB0}')
    dma224_offsets(a, DOFF, 1792, 9, FR, FR+1, FR+2)
    for i in range(28):
        a(f'v_mov_b32 v{ACC+i}, 0')
    a('s_waitcnt lgkmcnt(0)')
    srd(a, 32, 20, S*S*2)
    srd(a, 36, 30, ZBYTES, WS_Z2N)
    srd(a, 40, 30, ZBYTES, WS_Z1)
    srd(a, 44, 30, ZBYTES, WS_H)
    srd(a, 56, 22, S*2)
    a(f'buffer_load_ushort v{VBI}, v{VBI}, s[56:59], 0 offen')
    for j in range(7):
        a(f'buffer_load_dwordx2 {vr(Z1+2*j,2)}, v{VO}, s[40:43], 0 offen offset:{j*32}')
    def issue(st):
        slot = st % NSLOT
        a(f's_add_u32 s50, s12, {st*128*1792}')
        a(f's_movk_i32 s51, {st*256}')
        for n in range(7):
            a(f's_add_u32 m0, s13, {slot*28672 + n*1024}')
            a('s_nop 0')
            a(f'buffer_load_dwordx4 v{DOFF+n}, s[36:39], s50 offen lds')
        for sub in range(4):
            a(f'buffer_load_dwordx4 {vr(AV+slot*16+sub*4,4)}, v{VA}, s[32:35], s51 offen offset:{sub*64}')
    for st in range(DEPTH):
        issue(st)
    def frag_reads(st, sub, buf):
        slot = st % NSLOT
        base = (VB0, VB0, VB1, VB1, VB2)[slot]
        off = (slot & 1)*28672 + sub*7168
        for j in range(7):
            for h in range(2):
                a(f'ds_read_b64_tr_b16 {vr(FR+buf*28+j*4+h*2,2)}, v{base} offset:{off+h*3584+j*32}')
    def mfmas(st, sub, buf):
        slot = st % NSLOT
        for j in range(7):
            c = ACC + j*4
            a(f'v_mfma_f32_16x16x32_bf16 {vr(c,4)}, {vr(FR+buf*28+j*4,4)}, {vr(AV+slot*16+sub*4,4)}, {vr(c,4)}')
    for st in range(NST):
        a(f's_waitcnt vmcnt({11*min(DEPTH-1, NST-1-st)})')
        a('s_barrier')
        frag_reads(st, 0, 0)
        if st + DEPTH < NST:
            issue(st + DEPTH)
        for sub in range(4):
            if sub < 3:
                frag_reads(st, sub+1, (sub+1) & 1)
                a('s_waitcnt lgkmcnt(14)')
            else:
                a('s_waitcnt lgkmcnt(0)')
            mfmas(st, sub, sub & 1)
    a('s_nop 7')
    a('s_nop 7')
    a(f'v_lshlrev_b32 v{VBI}, 16, v{VBI}')
    T = FR
    for j in range(7):
        c = ACC + j*4
        u = [T+0, T+1, T+2, T+3]
        w = [T+4, T+5]
        z = [T+6, T+7, T+8, T+9]
        p = T+10 + (j & 3)*2
        a(f'v_cvt_pk_bf16_f32 v{w[0]}, v{c}, v{c+1}')
        a(f'v_cvt_pk_bf16_f32 v{w[1]}, v{c+2}, v{c+3}')
        a(f'v_lshlrev_b32 v{u[0]}, 16, v{w[0]}')
        a(f'v_and_b32 v{u[1]}, 0xffff0000, v{w[0]}')
        a(f'v_lshlrev_b32 v{u[2]}, 16, v{w[1]}')
        a(f'v_and_b32 v{u[3]}, 0xffff0000, v{w[1]}')
        for i in range(4): a(f'v_add_f32 v{u[i]}, v{u[i]}, v{VBI}')
        a(f'v_cvt_pk_bf16_f32 v{w[0]}, v{u[0]}, v{u[1]}')
        a(f'v_cvt_pk_bf16_f32 v{w[1]}, v{u[2]}, v{u[3]}')
        a(f'v_lshlrev_b32 v{u[0]}, 16, v{w[0]}')
        a(f'v_and_b32 v{u[1]}, 0xffff0000, v{w[0]}')
        a(f'v_lshlrev_b32 v{u[2]}, 16, v{w[1]}')
        a(f'v_and_b32 v{u[3]}, 0xffff0000, v{w[1]}')
        a(f'v_lshlrev_b32 v{z[0]}, 16, v{Z1+2*j}')
        a(f'v_and_b32 v{z[1]}, 0xffff0000, v{Z1+2*j}')
        a(f'v_lshlrev_b32 v{z[2]}, 16, v{Z1+2*j+1}')
        a(f'v_and_b32 v{z[3]}, 0xffff0000, v{Z1+2*j+1}')
        for i in range(4): a(f'v_mul_f32 v{u[i]}, v{u[i]}, v{z[i]}')
        a(f'v_cvt_pk_bf16_f32 v{p}, v{u[0]}, v{u[1]}')
        a(f'v_cvt_pk_bf16_f32 v{p+1}, v{u[2]}, v{u[3]}')
        a(f'buffer_store_dwordx2 {vr(p,2)}, v{VO}, s[44:47], 0 offen offset:{j*32}')
    kernel_tail(a, name)
    return descriptor(name, 200)

def gen_k4(a):
    name = 'k4_kernel'
    kernel_head(a, name, 224)
    lane_setup(a)
    a('''
    s_and_b32 s3, s2, 7
    s_lshr_b32 s4, s2, 3
    s_lshl_b32 s5, s3, 2
    s_and_b32 s6, s4, 3
    s_add_u32 s5, s5, s6          ; tb 0..31
    s_lshr_b32 s6, s4, 2          ; db 0..6
    s_lshl_b32 s9, s6, 7
    s_lshl_b32 s10, s5, 6
    s_lshl_b32 s11, s8, 4
    s_add_u32 s10, s10, s11
    ''')
    VA, VO = 3, 4
    VBJ = 176
    FR, AV, ACC, DOFF = 8, 48, 160, 184
    a(f'v_add_u32 v{VA}, s10, v1')
    a(f'v_mul_u32_u24 v{VO}, 896, v{VA}')
    a(f'v_mul_u32_u24 v{VA}, 1792, v{VA}')
    a(f'v_lshl_add_u32 v{VA}, v2, 4, v{VA}')
    a(f'v_lshl_add_u32 v{VO}, v2, 3, v{VO}')
    a(f'v_add_u32 v{VO}, s9, v{VO}')
    t0, t1, t2 = FR, FR+1, FR+2
    a(f'v_lshrrev_b32 v{t0}, 2, v1')
    a(f'v_lshl_add_u32 v{t0}, v2, 2, v{t0}')
    a(f'v_bfe_u32 v{t1}, v{t0}, 1, 2')
    a(f'v_and_b32 v{t2}, 3, v1')
    a(f'v_lshlrev_b32 v{t2}, 3, v{t2}')
    a(f'v_lshl_add_u32 v{t2}, v{t0}, 7, v{t2}')
    for j in range(4):
        a(f'v_xor_b32 v{t0}, {j}, v{t1}')
        a(f'v_lshl_add_u32 v{VBJ+j}, v{t0}, 5, v{t2}')
        a(f'v_add_u32 v{VBJ+4+j}, 0x10000, v{VBJ+j}')
    for n in range(4):
        a(f'v_lshrrev_b32 v{t0}, 3, v0')
        a(f'v_add_u32 v{t0}, {8*n}, v{t0}')
        a(f'v_bfe_u32 v{t1}, v{t0}, 1, 2')
        a(f'v_bfe_u32 v{t2}, v0, 1, 2')
        a(f'v_xor_b32 v{t1}, v{t1}, v{t2}')
        a(f'v_and_b32 v{t2}, 1, v0')
        a(f'v_lshl_add_u32 v{t1}, v{t1}, 1, v{t2}')
        a(f'v_lshlrev_b32 v{t1}, 4, v{t1}')
        a(f'v_bfe_u32 v{t2}, v{t0}, 2, 2')
        a(f'v_lshlrev_b32 v{t2}, 3, v{t2}')
        a(f'v_and_b32 v{DOFF+n}, 3, v{t0}')
        a(f'v_add_u32 v{t2}, v{t2}, v{DOFF+n}')
        a(f'v_lshrrev_b32 v{t0}, 4, v{t0}')
        a(f'v_lshl_add_u32 v{t2}, v{t0}, 2, v{t2}')
        a(f'v_mul_u32_u24 v{t2}, 896, v{t2}')
        a(f'v_add3_u32 v{DOFF+n}, v{t2}, v{t1}, s9')
    for i in range(16):
        a(f'v_mov_b32 v{ACC+i}, 0')
    a('s_waitcnt lgkmcnt(0)')
    srd(a, 32, 30, ZBYTES, WS_H)
    srd(a, 36, 24, FH*D*2)
    srd(a, 40, 26, S*D*2)
    def dma_group(q):
        a(f's_add_u32 s50, s8, {4*q}')
        a('s_mul_i32 s51, s50, 28672')
        a('s_lshl_b32 s52, s50, 12')
        for n in range(4):
            a(f's_add_u32 m0, s52, {n*1024}')
            a('s_nop 0')
            a(f'buffer_load_dwordx4 v{DOFF+n}, s[36:39], s51 offen lds')
    def a_loads(k0, k1):
        for ks in range(k0, k1):
            a(f'buffer_load_dwordx4 {vr(AV+ks*4,4)}, v{VA}, s[32:35], 0 offen offset:{ks*64}')
    for q in range(7):
        dma_group(q); a_loads(4*q, 4*q+4)
    def frag_reads(ks, buf):
        hi = 4 if ks >= 16 else 0
        off = (ks & 15)*4096
        for j in range(4):
            for h in range(2):
                a(f'ds_read_b64_tr_b16 {vr(FR+buf*16+j*4+h*2,2)}, v{VBJ+hi+j} offset:{off+h*2048}')
    def mfmas(ks, buf):
        for j in range(4):
            c = ACC + j*4
            a(f'v_mfma_f32_16x16x32_bf16 {vr(c,4)}, {vr(FR+buf*16+j*4,4)}, {vr(AV+ks*4,4)}, {vr(c,4)}')
    for (k0, k1, wcnt) in ((0, 8, 40), (8, 16, 24), (16, 24, 8), (24, 28, 0)):
        a(f's_waitcnt vmcnt({wcnt})')
        a('s_barrier')
        frag_reads(k0, k0 & 1)
        for ks in range(k0, k1):
            if ks + 1 < k1:
                frag_reads(ks+1, (ks+1) & 1)
                a('s_waitcnt lgkmcnt(8)')
            else:
                a('s_waitcnt lgkmcnt(0)')
            mfmas(ks, ks & 1)
    a('s_nop 7')
    a('s_nop 7')
    for j in range(4):
        c = ACC + j*4
        p = FR + j*2
        a(f'v_cvt_pk_bf16_f32 v{p}, v{c}, v{c+1}')
        a(f'v_cvt_pk_bf16_f32 v{p+1}, v{c+2}, v{c+3}')
        a(f'buffer_store_dwordx2 {vr(p,2)}, v{VO}, s[40:43], 0 offen offset:{j*32}')
    kernel_tail(a, name)
    return descriptor(name, 192)

HEADER = open('standalone__mixer_gmlp__prompt.s.ref').read().split('; Override')[0]

def main():
    a = Asm()
    d = []
    d.append(gen_k1(a))
    d.append(gen_k2(a))
    d.append(gen_k3(a))
    d.append(gen_k4(a))
    out = HEADER
    out += '; @launch kernel=k1_kernel grid=(256,1,1) block=(256,1,1) lds=100352\n'
    out += '; @launch kernel=k2_kernel grid=(512,1,1) block=(256,1,1) lds=0\n'
    out += '; @launch kernel=k3_kernel grid=(256,1,1) block=(256,1,1) lds=143360\n'
    out += '; @launch kernel=k4_kernel grid=(224,1,1) block=(256,1,1) lds=114688\n'
    out += '.amdgcn_target "amdgcn-amd-amdhsa--gfx950"\n.text\n'
    out += a.text()
    out += '.section .rodata,"a"\n'
    for x in d:
        out += '.p2align 6\n' + x
    path = sys.argv[1] if len(sys.argv) > 1 else 'standalone__mixer_gmlp__prompt.s'
    open(path, 'w').write(out)

main()
```

```python
import math, struct, sys

S, D, F, FH = 2048, 448, 1792, 896
WS_Z1, WS_Z2R, WS_Z2N, WS_H = 0x0, 0x400000, 0x800000, 0xC00000
ZBYTES = S * FH * 2
STAMP = False
import os
X_NOCOMP = os.environ.get('X_NOCOMP')
X_NOA = os.environ.get('X_NOA')
X_NOB = os.environ.get('X_NOB')

def f32bits(x):
    return struct.unpack('<I', struct.pack('<f', x))[0]

class Asm:
    def __init__(self):
        self.l = []
    def __call__(self, s):
        for line in s.strip('\n').split('\n'):
            self.l.append('    ' + line.strip())
    def label(self, s):
        self.l.append(s + ':')
    def raw(self, s):
        self.l.append(s)
    def text(self):
        return '\n'.join(self.l) + '\n'

def vr(b, n): return f'v[{b}:{b+n-1}]'
def ar(b, n): return f'a[{b}:{b+n-1}]'

def srd(a, sd, sbase, nbytes, off=0):
    if off:
        a(f's_add_u32 s{sd}, s{sbase}, {off:#x}')
        a(f's_addc_u32 s{sd+1}, s{sbase+1}, 0')
        a(f's_and_b32 s{sd+1}, s{sd+1}, 0xffff')
    else:
        a(f's_mov_b32 s{sd}, s{sbase}')
        a(f's_and_b32 s{sd+1}, s{sbase+1}, 0xffff')
    a(f's_mov_b32 s{sd+2}, {nbytes:#x}')
    a(f's_mov_b32 s{sd+3}, 0x00020000')

def kernel_head(a, name, nwg):
    a.raw(f'.globl {name}')
    a.raw('.p2align 8')
    a.raw(f'.type {name},@function')
    a.label(name)
    a(f's_cmp_ge_u32 s2, {nwg}')
    a(f's_cbranch_scc1 {name}_done')
    a('s_load_dwordx16 s[16:31], s[0:1], 0')

def kernel_tail(a, name):
    a.label(f'{name}_done')
    a('s_endpgm')

def descriptor(name, vgpr, agpr=0, sgpr=100):
    if STAMP: vgpr = max(vgpr, 256) if vgpr > 128 or agpr else max(vgpr, 128)
    acc = (vgpr + 3) // 4 * 4
    return f'''.amdhsa_kernel {name}
  .amdhsa_next_free_vgpr {acc + agpr if agpr else vgpr}
  .amdhsa_next_free_sgpr {sgpr}
  .amdhsa_accum_offset {acc}
  .amdhsa_group_segment_fixed_size 0
  .amdhsa_kernarg_size 64
  .amdhsa_user_sgpr_count 2
  .amdhsa_user_sgpr_kernarg_segment_ptr 1
  .amdhsa_system_sgpr_workgroup_id_x 1
.end_amdhsa_kernel
'''

def stamp_init(a, kid, wpw=4):
    if not STAMP: return
    a(f's_add_u32 s60, s30, {0x1000000 + kid*0x100000:#x}')
    a('s_addc_u32 s61, s31, 0')
    a('s_and_b32 s61, s61, 0xffff')
    a('s_mov_b32 s62, 0x100000')
    a('s_mov_b32 s63, 0x00020000')
    a(f's_mul_i32 s64, s2, {wpw}')
    a('s_add_u32 s64, s64, s8')
    a('s_lshl_b32 s64, s64, 8')
    stamp(a, 0, real=True); stamp(a, 1)
def stamp(a, idx, real=False):
    if not STAMP: return
    a('s_memrealtime s[66:67]' if real else 's_memtime s[66:67]')
    a('s_waitcnt lgkmcnt(0)')
    a(f's_mov_b32 s{70+idx}, s66')
def stamp_flush(a, n, vt=126):
    if not STAMP: return
    a('s_waitcnt vmcnt(0)')
    stamp(a, n, real=False)
    stamp(a, n+1, real=True)
    a(f'v_mov_b32 v{vt+1}, 0')
    for i in range(n+2):
        a(f'v_mov_b32 v{vt}, s{70+i}')
        a(f'buffer_store_dword v{vt}, v{vt+1}, s[60:63], s64 offen offset:{i*4}')

def lane_setup(a):
    a('v_lshrrev_b32 v1, 6, v0')
    a('v_and_b32 v0, 63, v0')
    a('v_readfirstlane_b32 s8, v1')
    a('v_and_b32 v1, 15, v0')
    a('v_lshrrev_b32 v2, 4, v0')

GC0 = -2.0 * math.log2(math.e) * math.sqrt(2.0 / math.pi)
GC1 = GC0 * 0.044715

def unpack4(a, u, lo, hi):
    a(f'v_lshlrev_b32 v{u[0]}, 16, v{lo}')
    a(f'v_and_b32 v{u[1]}, 0xffff0000, v{lo}')
    a(f'v_lshlrev_b32 v{u[2]}, 16, v{hi}')
    a(f'v_and_b32 v{u[3]}, 0xffff0000, v{hi}')


def loader_loop(a, NST, NSLOT, per, issue, P=3, extra=None, nextra=0):
    nxt = 0
    ex = 0
    def do_issue():
        nonlocal nxt, ex
        issue(nxt); nxt += 1
        if nxt == NST and extra:
            extra(); ex = nextra
    for _ in range(min(P, NSLOT, NST)):
        do_issue()
    for st in range(NST):
        a(f's_waitcnt vmcnt({per*(nxt-1-st) + ex})')
        a('s_barrier')
        lim = min(NST-1, st-1+NSLOT if st >= 1 else NSLOT-1)
        for _ in range(2):
            if nxt <= lim: do_issue()
    a('s_endpgm')

def compute_loop(a, NST, reads, mfmas, nreads, stampf=None):
    for st in range(NST):
        a('s_barrier')
        if stampf: stampf(st)
        reads(st, 0)
        if st > 0: mfmas(1)
        reads(st, 1)
        a(f's_waitcnt lgkmcnt({nreads})')
        mfmas(0)
        a('s_waitcnt lgkmcnt(0)')
    mfmas(1)
    a('s_nop 7')
    a('s_nop 7')

def dma(a, voff, srdn, soff, m0base, m0imm):
    a(f's_add_u32 m0, {m0base}, {m0imm}')
    a('s_nop 0')
    a(f'buffer_load_dwordx4 v{voff}, s[{srdn}:{srdn+3}], {soff} offen lds')

K1_SLOTS = 5
def gen_k1(a):
    name = 'k1_kernel'
    NS, NST = K1_SLOTS, 7
    kernel_head(a, name, 256)
    lane_setup(a)
    a('s_cmp_ge_u32 s2, 224')
    a('s_cbranch_scc1 k1_pf')
    a("""
    s_and_b32 s3, s2, 7
    s_lshr_b32 s4, s2, 3
    s_and_b32 s5, s3, 3
    s_lshl_b32 s5, s5, 2
    s_and_b32 s6, s4, 3
    s_add_u32 s5, s5, s6          ; rb 0..15
    s_lshr_b32 s6, s3, 2
    s_mul_i32 s6, s6, 7
    s_lshr_b32 s7, s4, 2
    s_add_u32 s6, s6, s7          ; cb 0..13
    s_cmp_ge_u32 s8, 8
    s_cbranch_scc1 k1_loader
    s_and_b32 s9, s8, 3           ; mw
    s_lshr_b32 s10, s8, 2         ; nw
    """)
    VO, VC0 = 3, 4
    T0, T1, T2 = 9, 10, 11
    AAD, BAD = 12, 18
    FA, FB = 32, 48
    ACC = 80
    NV = 112
    a('s_lshl_b32 s12, s9, 12')
    a(f'v_lshrrev_b32 v{T0}, 1, v1')
    a(f'v_xor_b32 v{T0}, v{T0}, v2')
    a(f'v_lshlrev_b32 v{T1}, 7, v1')
    a(f'v_add_u32 v{T1}, s12, v{T1}')
    a(f'v_lshl_add_u32 v{AAD}, v{T0}, 4, v{T1}')
    a(f'v_xor_b32 v{AAD+1}, 64, v{AAD}')
    a(f'v_lshrrev_b32 v{T0}, 2, v1')
    a(f'v_and_b32 v{T1}, 1, v2')
    a(f'v_lshl_add_u32 v{T1}, v{T1}, 2, v{T0}')
    a(f'v_lshl_add_u32 v{T0}, v2, 3, v{T0}')
    a(f'v_lshlrev_b32 v{T0}, 8, v{T0}')
    a(f'v_and_b32 v{T2}, 3, v1')
    a(f'v_lshl_add_u32 v{T0}, v{T2}, 3, v{T0}')
    a(f'v_add_u32 v{T0}, 16384, v{T0}')
    a('s_lshl_b32 s12, s10, 2')
    for j in range(4):
        a(f's_add_u32 s13, s12, {j}')
        a(f'v_xor_b32 v{T2}, s13, v{T1}')
        a(f'v_lshl_add_u32 v{BAD+j}, v{T2}, 5, v{T0}')
    for st in (1, 2):
        for i in range(2): a(f'v_add_u32 v{AAD+2*st+i}, {st*65536}, v{AAD+i}')
        for j in range(4): a(f'v_add_u32 v{BAD+4*st+j}, {st*65536}, v{BAD+j}')
    a("""
    s_lshl_b32 s12, s5, 3
    s_lshl_b32 s13, s9, 1
    s_add_u32 s12, s12, s13
    s_mul_i32 s12, s12, 56
    s_cmp_ge_u32 s6, 7
    s_cselect_b32 s13, 7, 0
    s_cselect_b32 s15, 0x400000, 0
    s_sub_u32 s13, s6, s13
    s_lshl_b32 s13, s13, 3
    s_add_u32 s12, s12, s13
    s_lshl_b32 s13, s10, 2
    s_add_u32 s12, s12, s13
    s_lshl_b32 s12, s12, 9
    s_add_u32 s12, s12, s15
    s_movk_i32 s13, 28672
    """)
    a(f'v_lshl_add_u32 v{VO}, v0, 3, s12')
    a(f'v_mov_b32 v{VC0}, {f32bits(GC0):#x}')
    a(f's_mov_b32 s48, {f32bits(GC1):#x}')
    for i in range(32):
        a(f'v_mov_b32 v{ACC+i}, 0')
    a('s_waitcnt lgkmcnt(0)')
    srd(a, 40, 30, 0x800000)
    stamp_init(a, 0, 8)
    a('s_cmp_ge_u32 s6, 7')
    a('s_cbranch_scc1 k1_z2')
    def reads(st, uu):
        slot = st % NS
        sset, soff = slot >> 1, (slot & 1)*32768
        for mt in range(2):
            a(f'ds_read_b128 {vr(FA+uu*8+mt*4,4)}, v{AAD+2*sset+uu} offset:{soff+mt*2048}')
        for j in range(4):
            for h in range(2):
                a(f'ds_read_b64_tr_b16 {vr(FB+uu*16+j*4+h*2,2)}, v{BAD+4*sset+j} offset:{soff+uu*8192+h*1024}')
    for zhalf in range(2):
        if zhalf: a.label('k1_z2')
        def mfmas(buf):
            for j in range(4):
                for mt in range(2):
                    c = ACC + (j*2+mt)*4
                    fb, fa = vr(FB+buf*16+j*4,4), vr(FA+buf*8+mt*4,4)
                    if zhalf == 0:
                        a(f'v_mfma_f32_16x16x32_bf16 {vr(c,4)}, {fb}, {fa}, {vr(c,4)}')
                    else:
                        a(f'v_mfma_f32_16x16x32_bf16 {vr(c,4)}, {fa}, {fb}, {vr(c,4)}')
        compute_loop(a, NST, reads, mfmas, 10, (lambda st: stamp(a, 2+st)) if zhalf == 0 else None)
        if zhalf == 0: stamp(a, 9)
        T = FA
        for j in range(4):
            for mt in range(2):
                c = ACC + (j*2+mt)*4
                u = [T+0, T+1, T+2, T+3]
                w = [T+4, T+5, T+6, T+7]
                p = T+8 + ((j*2+mt) & 3)*2
                a(f'v_cvt_pk_bf16_f32 v{w[0]}, v{c}, v{c+1}')
                a(f'v_cvt_pk_bf16_f32 v{w[1]}, v{c+2}, v{c+3}')
                unpack4(a, u, w[0], w[1])
                for i in range(4): a(f'v_mul_f32 v{w[i]}, v{u[i]}, v{u[i]}')
                for i in range(4): a(f'v_fma_f32 v{w[i]}, v{w[i]}, s48, v{VC0}')
                for i in range(4): a(f'v_mul_f32 v{w[i]}, v{w[i]}, v{u[i]}')
                for i in range(4): a(f'v_exp_f32 v{w[i]}, v{w[i]}')
                for i in range(4): a(f'v_add_f32 v{w[i]}, 1.0, v{w[i]}')
                for i in range(4): a(f'v_rcp_f32 v{w[i]}, v{w[i]}')
                for i in range(4): a(f'v_mul_f32 v{w[i]}, v{w[i]}, v{u[i]}')
                a(f'v_cvt_pk_bf16_f32 v{p}, v{w[0]}, v{w[1]}')
                a(f'v_cvt_pk_bf16_f32 v{p+1}, v{w[2]}, v{w[3]}')
                so = 's13' if mt else '0'
                a(f'buffer_store_dwordx2 {vr(p,2)}, v{VO}, s[40:43], {so} offen offset:{j*512}')
        if zhalf == 0:
            stamp(a, 10)
            stamp_flush(a, 11)
        a('s_endpgm')
    a.label('k1_loader')
    DA, DB = 4, 8
    T0, T1, T2 = 12, 13, 14
    a('s_sub_u32 s9, s8, 8')
    a('s_lshl_b32 s11, s5, 7')
    a('s_lshl_b32 s12, s9, 5')
    a('s_add_u32 s11, s11, s12')
    for e in range(4):
        a(f'v_lshrrev_b32 v{T0}, 3, v0')
        a(f'v_add_u32 v{T0}, {8*e}, v{T0}')
        a(f'v_add_u32 v{T0}, s11, v{T0}')
        a(f'v_mul_u32_u24 v{T0}, 896, v{T0}')
        a(f'v_add_u32 v{T1}, {4*(e&1)}, v2')
        a(f'v_and_b32 v{T2}, 7, v0')
        a(f'v_xor_b32 v{T1}, v{T1}, v{T2}')
        a(f'v_lshl_add_u32 v{DA+e}, v{T1}, 4, v{T0}')
    a('s_lshl_b32 s13, s9, 4')
    a('s_lshl_b32 s14, s6, 8')
    for e in range(4):
        a(f'v_add_u32 v{T0}, {4*e}, v2')
        a(f'v_add_u32 v{T0}, s13, v{T0}')
        a(f'v_mul_u32_u24 v{T0}, 3584, v{T0}')
        a(f'v_or_b32 v{T1}, {((e>>1)&1)<<2}, v2')
        a(f'v_lshrrev_b32 v{T2}, 1, v1')
        a(f'v_xor_b32 v{T1}, v{T1}, v{T2}')
        a(f'v_and_b32 v{T2}, 1, v0')
        a(f'v_lshl_add_u32 v{T1}, v{T1}, 1, v{T2}')
        a(f'v_lshl_add_u32 v{T0}, v{T1}, 4, v{T0}')
        a(f'v_add_u32 v{DB+e}, s14, v{T0}')
    a('s_lshl_b32 s49, s9, 12')
    a('s_waitcnt lgkmcnt(0)')
    srd(a, 32, 16, S*D*2)
    srd(a, 36, 18, D*F*2)
    def issue(st):
        slot = st % NS
        a(f's_movk_i32 s50, {st*128}')
        a(f's_mov_b32 s51, {st*64*3584}')
        for e in range(4):
            dma(a, DA+e, 32, 's50', 's49', slot*32768 + e*1024)
            dma(a, DB+e, 36, 's51', 's49', slot*32768 + 16384 + e*1024)
    loader_loop(a, NST, NS, 8, issue)
    a.label('k1_pf')
    a('s_cmp_ge_u32 s8, 8')
    a(f's_cbranch_scc1 {name}_done')
    a('s_sub_u32 s3, s2, 224')
    a('s_lshl_b32 s3, s3, 3')
    a('s_add_u32 s3, s3, s8')
    a('s_lshl_b32 s4, s3, 15')
    a('s_mul_i32 s5, s3, 3136')
    a('v_lshlrev_b32 v3, 4, v0')
    a('s_lshl_b32 s6, s8, 10')
    a('s_waitcnt lgkmcnt(0)')
    srd(a, 32, 20, S*S*2)
    srd(a, 36, 24, FH*D*2)
    a('s_mov_b32 m0, s6')
    for i in range(32):
        if i % 4 == 0:
            a(f's_add_u32 s7, s4, {i*1024}')
        a(f'buffer_load_dwordx4 v3, s[32:35], s7 offen offset:{(i%4)*1024} lds')
    for i in range(4):
        a(f'buffer_load_dwordx4 v3, s[36:39], s5 offen offset:{i*1024} lds')
    a('s_waitcnt vmcnt(0)')
    kernel_tail(a, name)
    return descriptor(name, NV)

def ror_sum(a, regs):
    for sh in (8, 4, 2, 1):
        a('s_nop 1')
        for v in regs:
            a(f'v_add_f32_dpp v{v}, v{v}, v{v} row_ror:{sh} row_mask:0xf bank_mask:0xf')

def rbf(a, v):
    a(f'v_cvt_pk_bf16_f32 v{v}, v{v}, v{v}')
    a(f'v_lshlrev_b32 v{v}, 16, v{v}')

def gen_k2(a):
    name = 'k2_kernel'
    kernel_head(a, name, 128)
    lane_setup(a)
    VI, VOUT, VL = 3, 4, 5
    RAW, X, SM, M2, MU, RS, SD, TT = 8, 24, 52, 56, 60, 64, 68, 72
    ST = 80
    a('''
    s_mul_i32 s3, s2, 56
    s_mul_i32 s4, s8, 7
    s_add_u32 s3, s3, s4
    s_lshl_b32 s3, s3, 9          ; (R*56 + 7w)*512
    s_lshl_b32 s5, s4, 16         ; 7w * 64 * 1024
    s_lshr_b32 s6, s2, 1
    s_lshl_b32 s6, s6, 10         ; kblk*1024
    s_add_u32 s5, s5, s6
    s_and_b32 s6, s2, 1
    s_lshl_b32 s6, s6, 9          ; 2(R&1)*16*16
    s_add_u32 s5, s5, s6
    s_mov_b32 s7, 0x10000
    ''')
    a(f'v_lshl_add_u32 v{VI}, v0, 3, s3')
    a(f'v_lshrrev_b32 v{VOUT}, 1, v2')
    a(f'v_lshl_add_u32 v{VOUT}, v{VOUT}, 4, v1')
    a(f'v_lshlrev_b32 v{VOUT}, 4, v{VOUT}')
    a(f'v_and_b32 v{VL}, 1, v2')
    a(f'v_lshl_add_u32 v{VOUT}, v{VL}, 3, v{VOUT}')
    a(f'v_add_u32 v{VOUT}, s5, v{VOUT}')
    a('s_waitcnt lgkmcnt(0)')
    srd(a, 32, 30, ZBYTES, WS_Z2R)
    srd(a, 36, 30, ZBYTES, WS_Z2N)
    for j in range(7):
        a(f'buffer_load_dwordx2 {vr(RAW+2*j,2)}, v{VI}, s[32:35], 0 offen offset:{j*512}')
    a('s_lshl_b32 s9, s8, 3')
    a(f'v_lshlrev_b32 v{VL}, 8, v2')
    a(f'v_add_u32 v6, s9, v{VL}')
    a('v_cmp_eq_u32 s[52:53], 0, v1')
    a('s_waitcnt vmcnt(0)')
    for j in range(7):
        unpack4(a, [X+4*j+r for r in range(4)], RAW+2*j, RAW+2*j+1)
    for r in range(4):
        a(f'v_add_f32 v{SM+r}, v{X+r}, v{X+4+r}')
        for j in range(2, 7):
            a(f'v_add_f32 v{SM+r}, v{SM+r}, v{X+4*j+r}')
    ror_sum(a, [SM+r for r in range(4)])
    a(f's_mov_b32 s10, {f32bits(1.0/112):#x}')
    for r in range(4):
        a(f'v_mul_f32 v{SM+r}, s10, v{SM+r}')
    for r in range(4):
        a(f'v_sub_f32 v{TT}, v{X+r}, v{SM+r}')
        a(f'v_mul_f32 v{M2+r}, v{TT}, v{TT}')
        for j in range(1, 7):
            a(f'v_sub_f32 v{TT}, v{X+4*j+r}, v{SM+r}')
            a(f'v_fmac_f32 v{M2+r}, v{TT}, v{TT}')
    ror_sum(a, [M2+r for r in range(4)])
    for r in range(4):
        a(f'v_mov_b32 v{MU+2*r}, v{SM+r}')
        a(f'v_mov_b32 v{MU+2*r+1}, v{M2+r}')
    a('s_mov_b64 exec, s[52:53]')
    for r in range(4):
        a(f'ds_write_b64 v6, {vr(MU+2*r,2)} offset:{r*64}')
    a('s_mov_b64 exec, -1')
    a('s_waitcnt lgkmcnt(0)')
    a('s_barrier')
    for r in range(4):
        for q in range(4):
            a(f'ds_read_b128 {vr(ST+16*r+4*q,4)}, v{VL} offset:{r*64+q*16}')
    a('s_waitcnt lgkmcnt(0)')
    a(f's_mov_b32 s10, {f32bits(0.125):#x}')
    a(f's_mov_b32 s11, {f32bits(112.0):#x}')
    a(f's_mov_b32 s12, {f32bits(1.0/896):#x}')
    for r in range(4):
        b = ST+16*r
        a(f'v_add_f32 v{MU+r}, v{b}, v{b+2}')
        for w in range(2, 8):
            a(f'v_add_f32 v{MU+r}, v{MU+r}, v{b+2*w}')
        a(f'v_mul_f32 v{MU+r}, s10, v{MU+r}')
        a(f'v_add_f32 v{RS+r}, v{b+1}, v{b+3}')
        for w in range(2, 8):
            a(f'v_add_f32 v{RS+r}, v{RS+r}, v{b+2*w+1}')
        a(f'v_sub_f32 v{TT}, v{b}, v{MU+r}')
        a(f'v_mul_f32 v{TT+1}, v{TT}, v{TT}')
        for w in range(1, 8):
            a(f'v_sub_f32 v{TT}, v{b+2*w}, v{MU+r}')
            a(f'v_fmac_f32 v{TT+1}, v{TT}, v{TT}')
        a(f'v_fma_f32 v{RS+r}, v{TT+1}, s11, v{RS+r}')
        a(f'v_mul_f32 v{SD+r}, s12, v{RS+r}')
    for r in range(4):
        rbf(a, MU+r)
        rbf(a, SD+r)
        a(f'v_add_f32 v{SD+r}, {f32bits(1e-5):#x}, v{SD+r}')
        rbf(a, SD+r)
        a(f'v_sqrt_f32 v{SD+r}, v{SD+r}')
    a('s_nop 0')
    for r in range(4):
        rbf(a, SD+r)
        a(f'v_rcp_f32 v{RS+r}, v{SD+r}')
    Y = ST
    for j in range(7):
        for r in range(4):
            a(f'v_sub_f32 v{Y+4*j+r}, v{X+4*j+r}, v{MU+r}')
        a(f'v_cvt_pk_bf16_f32 v{TT}, v{Y+4*j}, v{Y+4*j+1}')
        a(f'v_cvt_pk_bf16_f32 v{TT+1}, v{Y+4*j+2}, v{Y+4*j+3}')
        unpack4(a, [Y+4*j+r for r in range(4)], TT, TT+1)
        for r in range(4):
            x, y = X+4*j+r, Y+4*j+r
            a(f'v_mul_f32 v{x}, v{y}, v{RS+r}')
            a(f'v_fma_f32 v{y}, -v{x}, v{SD+r}, v{y}')
            a(f'v_fmac_f32 v{x}, v{y}, v{RS+r}')
        a(f'v_cvt_pk_bf16_f32 v{RAW+2*j}, v{X+4*j}, v{X+4*j+1}')
        a(f'v_cvt_pk_bf16_f32 v{RAW+2*j+1}, v{X+4*j+2}, v{X+4*j+3}')
        if j: a(f's_mov_b32 s13, {j*0x10000:#x}')
        a(f'buffer_store_dwordx2 {vr(RAW+2*j,2)}, v{VOUT}, s[36:39], {"s13" if j else "0"} offen')
    kernel_tail(a, name)
    return descriptor(name, 144)


K3_SLOTS, K3_SLOT = 7, 22528
def gen_k3(a):
    name = 'k3_kernel'
    kernel_head(a, name, 256)
    lane_setup(a)
    a("""
    s_and_b32 s3, s2, 7
    s_lshr_b32 s4, s2, 3
    s_and_b32 s5, s3, 3
    s_lshl_b32 s5, s5, 3
    s_and_b32 s6, s4, 7
    s_add_u32 s5, s5, s6          ; tb 0..31
    s_lshr_b32 s6, s3, 2
    s_lshl_b32 s6, s6, 2
    s_lshr_b32 s7, s4, 3
    s_add_u32 s6, s6, s7          ; fb 0..7
    s_mul_i32 s9, s6, 7
    s_cmp_ge_u32 s8, 4
    s_cbranch_scc1 k3_loader
    s_lshl_b32 s10, s8, 1
    s_add_u32 s9, s9, s10
    """)
    NST, NS, SL = 32, K3_SLOTS, K3_SLOT
    VZ, VH, VBI = 4, 5, 6
    T0, T1, T2 = 10, 11, 12
    AAD, BAD = 13, 21
    FA, FB = 28, 60
    ACC = 76
    Z1 = 108
    TE = 28
    NV = 128
    a(f'v_lshrrev_b32 v{T0}, 1, v1')
    a(f'v_xor_b32 v{T0}, v{T0}, v2')
    a(f'v_lshlrev_b32 v{T1}, 7, v1')
    a(f'v_lshl_add_u32 v{AAD}, v{T0}, 4, v{T1}')
    a(f'v_xor_b32 v{AAD+1}, 64, v{AAD}')
    a('s_lshl_b32 s12, s8, 12')
    a('s_add_u32 s12, s12, 8192')
    a(f'v_lshl_add_u32 v{BAD}, v0, 4, s12')
    for k in range(1, 4):
        a(f'v_add_u32 v{AAD+2*k}, {2*k*SL}, v{AAD}')
        a(f'v_add_u32 v{AAD+2*k+1}, {2*k*SL}, v{AAD+1}')
        a(f'v_add_u32 v{BAD+k}, {2*k*SL}, v{BAD}')
    a('s_lshl_b32 s12, s5, 2')
    a('s_mul_i32 s13, s12, 56')
    a('s_add_u32 s13, s13, s9')
    a('s_lshl_b32 s13, s13, 9')
    a(f'v_lshl_add_u32 v{VZ}, v0, 3, s13')
    a(f'v_lshrrev_b32 v{VH}, 1, v2')
    a(f'v_lshl_add_u32 v{VH}, v{VH}, 4, v1')
    a(f'v_lshlrev_b32 v{VH}, 4, v{VH}')
    a(f'v_and_b32 v{T0}, 1, v2')
    a(f'v_lshl_add_u32 v{VH}, v{T0}, 3, v{VH}')
    a('s_mul_i32 s13, s12, 28672')
    a('s_lshl_b32 s14, s9, 9')
    a('s_add_u32 s13, s13, s14')
    a(f'v_add_u32 v{VH}, s13, v{VH}')
    a('s_lshl_b32 s12, s5, 6')
    a(f'v_add_u32 v{T0}, s12, v1')
    a(f'v_lshlrev_b32 v{T0}, 1, v{T0}')
    for i in range(32):
        a(f'v_mov_b32 v{ACC+i}, 0')
    a('s_waitcnt lgkmcnt(0)')
    srd(a, 40, 30, ZBYTES, WS_Z1)
    srd(a, 44, 30, ZBYTES, WS_H)
    srd(a, 56, 22, S*2)
    stamp_init(a, 2, 4)
    for mt in range(4):
        a(f'buffer_load_ushort v{VBI+mt}, v{T0}, s[56:59], 0 offen offset:{mt*32}')
    a('s_cmp_eq_u32 s8, 3')
    a('s_cbranch_scc1 k3_w3')
    for NT in (2, 1):
        if NT == 1: a.label('k3_w3')
        for mt in range(4):
            a(f's_mov_b32 s13, {mt*28672}')
            for jj in range(NT):
                a(f'buffer_load_dwordx2 {vr(Z1+(jj*4+mt)*2,2)}, v{VZ}, s[40:43], s13 offen offset:{jj*512}')
        def reads(st, u):
            slot = st % NS
            sset, soff = slot >> 1, (slot & 1)*SL
            for mt in range(4):
                a(f'ds_read_b128 {vr(FA+u*16+mt*4,4)}, v{AAD+2*sset+u} offset:{soff+mt*2048}')
            for jj in range(NT):
                a(f'ds_read_b128 {vr(FB+u*8+jj*4,4)}, v{BAD+sset} offset:{soff+(jj*2+u)*1024}')
        def mfmas(buf):
            for jj in range(NT):
                for mt in range(4):
                    c = ACC + (jj*4+mt)*4
                    a(f'v_mfma_f32_16x16x32_bf16 {vr(c,4)}, {vr(FB+buf*8+jj*4,4)}, {vr(FA+buf*16+mt*4,4)}, {vr(c,4)}')
        compute_loop(a, NST, reads, mfmas, 4+NT, (lambda st: stamp(a, 2+st//2) if st % 2 == 0 else None) if NT == 2 else None)
        if NT == 2: stamp(a, 18)
        a('s_waitcnt vmcnt(0)')
        for mt in range(4):
            a(f'v_lshlrev_b32 v{VBI+mt}, 16, v{VBI+mt}')
        for jj in range(NT):
            for mt in range(4):
                c = ACC + (jj*4+mt)*4
                u = [TE+0, TE+1, TE+2, TE+3]
                w = [TE+4, TE+5]
                z = [TE+6, TE+7, TE+8, TE+9]
                p = TE+10 + (mt & 3)*2
                zz = Z1+(jj*4+mt)*2
                a(f'v_cvt_pk_bf16_f32 v{w[0]}, v{c}, v{c+1}')
                a(f'v_cvt_pk_bf16_f32 v{w[1]}, v{c+2}, v{c+3}')
                unpack4(a, u, w[0], w[1])
                for i in range(4): a(f'v_add_f32 v{u[i]}, v{u[i]}, v{VBI+mt}')
                a(f'v_cvt_pk_bf16_f32 v{w[0]}, v{u[0]}, v{u[1]}')
                a(f'v_cvt_pk_bf16_f32 v{w[1]}, v{u[2]}, v{u[3]}')
                unpack4(a, u, w[0], w[1])
                unpack4(a, z, zz, zz+1)
                for i in range(4): a(f'v_mul_f32 v{u[i]}, v{u[i]}, v{z[i]}')
                a(f'v_cvt_pk_bf16_f32 v{p}, v{u[0]}, v{u[1]}')
                a(f'v_cvt_pk_bf16_f32 v{p+1}, v{u[2]}, v{u[3]}')
                a(f's_mov_b32 s13, {mt*28672}')
                a(f'buffer_store_dwordx2 {vr(p,2)}, v{VH}, s[44:47], s13 offen offset:{jj*512}')
        if NT == 2:
            stamp(a, 19)
            stamp_flush(a, 20)
        a('s_endpgm')
    a.label('k3_loader')
    DA, DB = 4, 6
    T0, T1, T2 = 8, 9, 10
    a('s_sub_u32 s10, s8, 4')
    a('s_lshl_b32 s11, s5, 6')
    a('s_lshl_b32 s12, s10, 4')
    a('s_add_u32 s11, s11, s12')
    for e in range(2):
        a(f'v_lshrrev_b32 v{T0}, 3, v0')
        a(f'v_add_u32 v{T0}, {8*e}, v{T0}')
        a(f'v_add_u32 v{T0}, s11, v{T0}')
        a(f'v_lshlrev_b32 v{T0}, 12, v{T0}')
        a(f'v_add_u32 v{T1}, {4*e}, v2')
        a(f'v_and_b32 v{T2}, 7, v0')
        a(f'v_xor_b32 v{T1}, v{T1}, v{T2}')
        a(f'v_lshl_add_u32 v{DA+e}, v{T1}, 4, v{T0}')
    a('s_lshl_b32 s12, s9, 16')
    a(f'v_lshl_add_u32 v{DB}, v0, 4, s12')
    a('s_waitcnt lgkmcnt(0)')
    srd(a, 32, 20, S*S*2)
    srd(a, 36, 30, ZBYTES, WS_Z2N)
    lists = ([0,1,2,3], [4,5,6,7], [8,9,10], [11,12,13])
    for q in range(1, 4):
        a(f's_cmp_eq_u32 s10, {q}')
        a(f's_cbranch_scc1 k3_ld{q}')
    for q in range(4):
        if q: a.label(f'k3_ld{q}')
        def issue(st):
            slot = st % NS
            a(f's_movk_i32 s50, {st*128}')
            for e in range(2):
                dma(a, DA+e, 32, 's50', '0', slot*SL + (2*q+e)*1024)
            for idx in lists[q]:
                a(f's_mov_b32 s51, {(idx>>1)*65536 + (2*st + (idx&1))*1024}')
                dma(a, DB, 36, 's51', '0', slot*SL + 8192 + idx*1024)
        loader_loop(a, NST, NS, 2+len(lists[q]), issue)
    kernel_tail(a, name)
    return descriptor(name, NV)

K4_SLOTS = 10
def gen_k4(a):
    name = 'k4_kernel'
    NST, NS = 14, K4_SLOTS
    kernel_head(a, name, 224)
    lane_setup(a)
    a("""
    s_and_b32 s3, s2, 7
    s_lshr_b32 s4, s2, 3
    s_lshl_b32 s5, s3, 2
    s_and_b32 s6, s4, 3
    s_add_u32 s5, s5, s6          ; tb 0..31
    s_lshr_b32 s6, s4, 2          ; db 0..6
    s_lshl_b32 s9, s6, 7
    s_cmp_ge_u32 s8, 4
    s_cbranch_scc1 k4_loader
    s_lshl_b32 s10, s5, 6
    s_lshl_b32 s11, s8, 4
    s_add_u32 s10, s10, s11
    """)
    VO = 4
    AAD, BAD = 5, 8
    t0, t1, t2 = 20, 21, 22
    FA, FB, ACC = 24, 32, 64
    NV = 80
    a(f'v_add_u32 v{VO}, s10, v1')
    a(f'v_mul_u32_u24 v{VO}, 896, v{VO}')
    a(f'v_lshl_add_u32 v{VO}, v2, 3, v{VO}')
    a(f'v_add_u32 v{VO}, s9, v{VO}')
    a('s_lshl_b32 s11, s8, 11')
    a(f'v_lshl_add_u32 v{AAD}, v0, 4, s11')
    a(f'v_lshrrev_b32 v{t0}, 2, v1')
    a(f'v_lshl_add_u32 v{t0}, v2, 2, v{t0}')
    a(f'v_bfe_u32 v{t1}, v{t0}, 1, 2')
    a(f'v_and_b32 v{t2}, 3, v1')
    a(f'v_lshlrev_b32 v{t2}, 3, v{t2}')
    a(f'v_lshl_add_u32 v{t2}, v{t0}, 7, v{t2}')
    a(f'v_add_u32 v{t2}, 8192, v{t2}')
    for j in range(4):
        a(f'v_xor_b32 v{t0}, {j}, v{t1}')
        a(f'v_lshl_add_u32 v{BAD+j}, v{t0}, 5, v{t2}')
    for k in (1, 2):
        a(f'v_add_u32 v{AAD+k}, {k*65536}, v{AAD}')
        for j in range(4): a(f'v_add_u32 v{BAD+4*k+j}, {k*65536}, v{BAD+j}')
    for i in range(16):
        a(f'v_mov_b32 v{ACC+i}, 0')
    a('s_waitcnt lgkmcnt(0)')
    srd(a, 40, 26, S*D*2)
    stamp_init(a, 3, 4)
    def reads(st, u):
        slot = st % NS
        sset, soff = slot >> 2, (slot & 3)*16384
        a(f'ds_read_b128 {vr(FA+u*4,4)}, v{AAD+sset} offset:{soff+u*1024}')
        for j in range(4):
            for h in range(2):
                a(f'ds_read_b64_tr_b16 {vr(FB+u*16+j*4+h*2,2)}, v{BAD+4*sset+j} offset:{soff+u*4096+h*2048}')
    def mfmas(buf):
        for j in range(4):
            c = ACC + j*4
            a(f'v_mfma_f32_16x16x32_bf16 {vr(c,4)}, {vr(FB+buf*16+j*4,4)}, {vr(FA+buf*4,4)}, {vr(c,4)}')
    compute_loop(a, NST, reads, mfmas, 9, lambda st: stamp(a, 2+st))
    stamp(a, 16)
    for j in range(4):
        c = ACC + j*4
        p = FA + j*2
        a(f'v_cvt_pk_bf16_f32 v{p}, v{c}, v{c+1}')
        a(f'v_cvt_pk_bf16_f32 v{p+1}, v{c+2}, v{c+3}')
        a(f'buffer_store_dwordx2 {vr(p,2)}, v{VO}, s[40:43], 0 offen offset:{j*32}')
    stamp(a, 17)
    stamp_flush(a, 18)
    a('s_endpgm')
    a.label('k4_loader')
    DA, DB = 4, 5
    t0, t1, t2 = 6, 7, 8
    a('s_sub_u32 s10, s8, 4')
    a('s_lshl_b32 s11, s5, 2')
    a('s_add_u32 s11, s11, s10')
    a('s_mul_i32 s11, s11, 28672')
    a(f'v_lshl_add_u32 v{DA}, v0, 4, s11')
    a('s_lshl_b32 s12, s10, 3')
    a(f'v_lshrrev_b32 v{t0}, 3, v0')
    a(f'v_add_u32 v{t0}, s12, v{t0}')
    a(f'v_bfe_u32 v{t1}, v{t0}, 1, 2')
    a(f'v_bfe_u32 v{t2}, v0, 1, 2')
    a(f'v_xor_b32 v{t1}, v{t1}, v{t2}')
    a(f'v_and_b32 v{t2}, 1, v0')
    a(f'v_lshl_add_u32 v{t1}, v{t1}, 1, v{t2}')
    a(f'v_lshlrev_b32 v{t1}, 4, v{t1}')
    a(f'v_bfe_u32 v{t2}, v{t0}, 2, 2')
    a(f'v_lshlrev_b32 v{t2}, 3, v{t2}')
    a(f'v_and_b32 v{DB}, 3, v{t0}')
    a(f'v_add_u32 v{t2}, v{t2}, v{DB}')
    a(f'v_lshrrev_b32 v{t0}, 4, v{t0}')
    a(f'v_lshl_add_u32 v{t2}, v{t0}, 2, v{t2}')
    a(f'v_mul_u32_u24 v{t2}, 896, v{t2}')
    a(f'v_add3_u32 v{DB}, v{t2}, v{t1}, s9')
    a('s_lshl_b32 s48, s10, 11')
    a('s_lshl_b32 s49, s10, 10')
    a('s_waitcnt lgkmcnt(0)')
    srd(a, 32, 30, ZBYTES, WS_H)
    srd(a, 36, 24, FH*D*2)
    def issue(st):
        slot = st % NS
        for kb in range(2):
            a(f's_movk_i32 s50, {st*2048 + kb*1024}')
            dma(a, DA, 32, 's50', 's48', slot*16384 + kb*1024)
            a(f's_mov_b32 s51, {(64*st + 32*kb)*896}')
            dma(a, DB, 36, 's51', 's49', slot*16384 + 8192 + kb*4096)
    loader_loop(a, NST, NS, 4, issue)
    kernel_tail(a, name)
    return descriptor(name, NV)

HEADER = open('standalone__mixer_gmlp__prompt.s.ref').read().split('; Override')[0]

def main():
    global STAMP
    if '--stamp' in sys.argv:
        STAMP = True; sys.argv.remove('--stamp')
    a = Asm()
    d = [gen_k1(a), gen_k2(a), gen_k3(a), gen_k4(a)]
    out = HEADER
    out += f'; @launch kernel=k1_kernel grid=(256,1,1) block=(768,1,1) lds={K1_SLOTS*32768}\n'
    out += '; @launch kernel=k2_kernel grid=(128,1,1) block=(512,1,1) lds=1024\n'
    out += f'; @launch kernel=k3_kernel grid=(256,1,1) block=(512,1,1) lds={K3_SLOTS*K3_SLOT}\n'
    out += f'; @launch kernel=k4_kernel grid=(224,1,1) block=(512,1,1) lds={K4_SLOTS*16384}\n'
    out += '.amdgcn_target "amdgcn-amd-amdhsa--gfx950"\n.text\n'
    out += a.text()
    out += '.section .rodata,"a"\n'
    for x in d:
        out += '.p2align 6\n' + x
    path = sys.argv[1] if len(sys.argv) > 1 else 'standalone__mixer_gmlp__prompt.s'
    open(path, 'w').write(out)

main()
```

```python
import math, struct, sys

S, D, F, FH = 2048, 448, 1792, 896
WS_Z1, WS_Z2R, WS_Z2N, WS_H, WS_ST = 0x0, 0x400000, 0x800000, 0xC00000, 0x1800000
ZBYTES = S * FH * 2
STAMP = False
import os
X_NOCOMP = os.environ.get('X_NOCOMP')
X_NOA = os.environ.get('X_NOA')
X_NOB = os.environ.get('X_NOB')

def f32bits(x):
    return struct.unpack('<I', struct.pack('<f', x))[0]

class Asm:
    def __init__(self):
        self.l = []
    def __call__(self, s):
        for line in s.strip('\n').split('\n'):
            self.l.append('    ' + line.strip())
    def label(self, s):
        self.l.append(s + ':')
    def raw(self, s):
        self.l.append(s)
    def text(self):
        return '\n'.join(self.l) + '\n'

def vr(b, n): return f'v[{b}:{b+n-1}]'
def ar(b, n): return f'a[{b}:{b+n-1}]'

def srd(a, sd, sbase, nbytes, off=0):
    if off:
        a(f's_add_u32 s{sd}, s{sbase}, {off:#x}')
        a(f's_addc_u32 s{sd+1}, s{sbase+1}, 0')
        a(f's_and_b32 s{sd+1}, s{sd+1}, 0xffff')
    else:
        a(f's_mov_b32 s{sd}, s{sbase}')
        a(f's_and_b32 s{sd+1}, s{sbase+1}, 0xffff')
    a(f's_mov_b32 s{sd+2}, {nbytes:#x}')
    a(f's_mov_b32 s{sd+3}, 0x00020000')

def kernel_head(a, name, nwg):
    a.raw(f'.globl {name}')
    a.raw('.p2align 8')
    a.raw(f'.type {name},@function')
    a.label(name)
    a(f's_cmp_ge_u32 s2, {nwg}')
    a(f's_cbranch_scc1 {name}_done')
    a('s_load_dwordx16 s[16:31], s[0:1], 0')

def kernel_tail(a, name):
    a.label(f'{name}_done')
    a('s_endpgm')

def descriptor(name, vgpr, agpr=0, sgpr=100):
    if STAMP: vgpr = max(vgpr, 256) if vgpr > 128 or agpr else max(vgpr, 128)
    acc = (vgpr + 3) // 4 * 4
    return f'''.amdhsa_kernel {name}
  .amdhsa_next_free_vgpr {acc + agpr if agpr else vgpr}
  .amdhsa_next_free_sgpr {sgpr}
  .amdhsa_accum_offset {acc}
  .amdhsa_group_segment_fixed_size 0
  .amdhsa_kernarg_size 64
  .amdhsa_user_sgpr_count 2
  .amdhsa_user_sgpr_kernarg_segment_ptr 1
  .amdhsa_system_sgpr_workgroup_id_x 1
.end_amdhsa_kernel
'''

def stamp_init(a, kid, wpw=4):
    if not STAMP: return
    a(f's_add_u32 s60, s30, {0x1000000 + kid*0x100000:#x}')
    a('s_addc_u32 s61, s31, 0')
    a('s_and_b32 s61, s61, 0xffff')
    a('s_mov_b32 s62, 0x100000')
    a('s_mov_b32 s63, 0x00020000')
    a(f's_mul_i32 s64, s2, {wpw}')
    a('s_add_u32 s64, s64, s8')
    a('s_lshl_b32 s64, s64, 8')
    stamp(a, 0, real=True); stamp(a, 1)
def stamp(a, idx, real=False):
    if not STAMP: return
    a('s_memrealtime s[66:67]' if real else 's_memtime s[66:67]')
    a('s_waitcnt lgkmcnt(0)')
    a(f's_mov_b32 s{70+idx}, s66')
def stamp_flush(a, n, vt=126):
    if not STAMP: return
    a('s_waitcnt vmcnt(0)')
    stamp(a, n, real=False)
    stamp(a, n+1, real=True)
    a(f'v_mov_b32 v{vt+1}, 0')
    for i in range(n+2):
        a(f'v_mov_b32 v{vt}, s{70+i}')
        a(f'buffer_store_dword v{vt}, v{vt+1}, s[60:63], s64 offen offset:{i*4}')

def lane_setup(a):
    a('v_lshrrev_b32 v1, 6, v0')
    a('v_and_b32 v0, 63, v0')
    a('v_readfirstlane_b32 s8, v1')
    a('v_and_b32 v1, 15, v0')
    a('v_lshrrev_b32 v2, 4, v0')

GC0 = -2.0 * math.log2(math.e) * math.sqrt(2.0 / math.pi)
GC1 = GC0 * 0.044715

def unpack4(a, u, lo, hi):
    a(f'v_lshlrev_b32 v{u[0]}, 16, v{lo}')
    a(f'v_and_b32 v{u[1]}, 0xffff0000, v{lo}')
    a(f'v_lshlrev_b32 v{u[2]}, 16, v{hi}')
    a(f'v_and_b32 v{u[3]}, 0xffff0000, v{hi}')


def loader_loop(a, NST, NSLOT, per, issue, P=3, extra=None, nextra=0):
    nxt = 0
    ex = 0
    def do_issue():
        nonlocal nxt, ex
        issue(nxt); nxt += 1
        if nxt == NST and extra:
            extra(); ex = nextra
    for _ in range(min(P, NSLOT, NST)):
        do_issue()
    for st in range(NST):
        a(f's_waitcnt vmcnt({per*(nxt-1-st) + ex})')
        a('s_barrier')
        lim = min(NST-1, st-1+NSLOT if st >= 1 else NSLOT-1)
        for _ in range(2):
            if nxt <= lim: do_issue()
    a('s_endpgm')

def compute_loop(a, NST, reads, mfmas, nreads, stampf=None):
    for st in range(NST):
        a('s_barrier')
        if stampf: stampf(st)
        reads(st, 0)
        if st > 0: mfmas(1)
        reads(st, 1)
        a(f's_waitcnt lgkmcnt({nreads})')
        mfmas(0)
        a('s_waitcnt lgkmcnt(0)')
    mfmas(1)
    a('s_nop 7')
    a('s_nop 7')

def dma(a, voff, srdn, soff, m0base, m0imm):
    a(f's_add_u32 m0, {m0base}, {m0imm}')
    a('s_nop 0')
    a(f'buffer_load_dwordx4 v{voff}, s[{srdn}:{srdn+3}], {soff} offen lds')

def ror_sum(a, regs):
    for sh in (8, 4, 2, 1):
        a('s_nop 1')
        for v in regs:
            a(f'v_add_f32_dpp v{v}, v{v}, v{v} row_ror:{sh} row_mask:0xf bank_mask:0xf')

def rbf(a, v):
    a(f'v_cvt_pk_bf16_f32 v{v}, v{v}, v{v}')
    a(f'v_lshlrev_b32 v{v}, 16, v{v}')

K1_SLOTS = 5
def gen_k1(a):
    name = 'k1_kernel'
    NS, NST = K1_SLOTS, 7
    kernel_head(a, name, 256)
    lane_setup(a)
    a('s_cmp_ge_u32 s2, 224')
    a('s_cbranch_scc1 k1_pf')
    a("""
    s_and_b32 s3, s2, 7
    s_lshr_b32 s4, s2, 3
    s_and_b32 s5, s3, 3
    s_lshl_b32 s5, s5, 2
    s_and_b32 s6, s4, 3
    s_add_u32 s5, s5, s6          ; rb 0..15
    s_lshr_b32 s7, s4, 2          ; c7 0..6
    s_lshr_b32 s6, s3, 2          ; xh 0/1
    s_add_u32 s14, s6, 3
    s_lshl_b32 s15, s6, 2
    s_sub_u32 s15, s15, s14
    s_mul_i32 s6, s6, 3
    s_add_u32 s6, s6, 7
    s_cmp_lt_u32 s7, s14
    s_cselect_b32 s6, s6, s15
    s_add_u32 s6, s6, s7          ; cb 0..13
    s_cmp_ge_u32 s8, 8
    s_cbranch_scc1 k1_loader
    s_and_b32 s9, s8, 3           ; mw
    s_lshr_b32 s10, s8, 2         ; nw
    """)
    VO, VC0 = 3, 4
    T0, T1, T2 = 9, 10, 11
    AAD, BAD = 12, 18
    FA, FB = 32, 48
    ACC = 80
    NV = 112
    a('s_lshl_b32 s12, s9, 12')
    a(f'v_lshrrev_b32 v{T0}, 1, v1')
    a(f'v_xor_b32 v{T0}, v{T0}, v2')
    a(f'v_lshlrev_b32 v{T1}, 7, v1')
    a(f'v_add_u32 v{T1}, s12, v{T1}')
    a(f'v_lshl_add_u32 v{AAD}, v{T0}, 4, v{T1}')
    a(f'v_xor_b32 v{AAD+1}, 64, v{AAD}')
    a(f'v_lshrrev_b32 v{T0}, 2, v1')
    a(f'v_and_b32 v{T1}, 1, v2')
    a(f'v_lshl_add_u32 v{T1}, v{T1}, 2, v{T0}')
    a(f'v_lshl_add_u32 v{T0}, v2, 3, v{T0}')
    a(f'v_lshlrev_b32 v{T0}, 8, v{T0}')
    a(f'v_and_b32 v{T2}, 3, v1')
    a(f'v_lshl_add_u32 v{T0}, v{T2}, 3, v{T0}')
    a(f'v_add_u32 v{T0}, 16384, v{T0}')
    a('s_lshl_b32 s12, s10, 2')
    for j in range(4):
        a(f's_add_u32 s13, s12, {j}')
        a(f'v_xor_b32 v{T2}, s13, v{T1}')
        a(f'v_lshl_add_u32 v{BAD+j}, v{T2}, 5, v{T0}')
    for st in (1, 2):
        for i in range(2): a(f'v_add_u32 v{AAD+2*st+i}, {st*65536}, v{AAD+i}')
        for j in range(4): a(f'v_add_u32 v{BAD+4*st+j}, {st*65536}, v{BAD+j}')
    a("""
    s_lshl_b32 s12, s5, 3
    s_lshl_b32 s13, s9, 1
    s_add_u32 s12, s12, s13
    s_mul_i32 s12, s12, 56
    s_cmp_ge_u32 s6, 7
    s_cselect_b32 s13, 7, 0
    s_cselect_b32 s15, 0x400000, 0
    s_sub_u32 s13, s6, s13
    s_lshl_b32 s13, s13, 3
    s_add_u32 s12, s12, s13
    s_lshl_b32 s13, s10, 2
    s_add_u32 s12, s12, s13
    s_lshl_b32 s12, s12, 9
    s_add_u32 s12, s12, s15
    s_movk_i32 s13, 28672
    """)
    a(f'v_lshl_add_u32 v{VO}, v0, 3, s12')
    a(f'v_mov_b32 v{VC0}, {f32bits(GC0):#x}')
    a(f'v_mov_b32 v{VC0+1}, {f32bits(GC0):#x}')
    a(f's_mov_b32 s48, {f32bits(GC1):#x}')
    a(f's_mov_b32 s49, {f32bits(GC1):#x}')
    for i in range(32):
        a(f'v_mov_b32 v{ACC+i}, 0')
    a('s_waitcnt lgkmcnt(0)')
    srd(a, 40, 30, 0x800000)
    stamp_init(a, 0, 8)
    a('s_cmp_ge_u32 s6, 7')
    a('s_cbranch_scc1 k1_z2')
    def reads(st, uu):
        slot = st % NS
        sset, soff = slot >> 1, (slot & 1)*32768
        for mt in range(2):
            a(f'ds_read_b128 {vr(FA+uu*8+mt*4,4)}, v{AAD+2*sset+uu} offset:{soff+mt*2048}')
        for j in range(4):
            for h in range(2):
                a(f'ds_read_b64_tr_b16 {vr(FB+uu*16+j*4+h*2,2)}, v{BAD+4*sset+j} offset:{soff+uu*8192+h*1024}')
    for zhalf in range(2):
        if zhalf: a.label('k1_z2')
        def mfmas(buf):
            for j in range(4):
                for mt in range(2):
                    c = ACC + (j*2+mt)*4
                    fb, fa = vr(FB+buf*16+j*4,4), vr(FA+buf*8+mt*4,4)
                    if zhalf == 0:
                        a(f'v_mfma_f32_16x16x32_bf16 {vr(c,4)}, {fb}, {fa}, {vr(c,4)}')
                    else:
                        a(f'v_mfma_f32_16x16x32_bf16 {vr(c,4)}, {fa}, {fb}, {vr(c,4)}')
        compute_loop(a, NST, reads, mfmas, 10, (lambda st: stamp(a, 2+st)) if zhalf == 1 else None)
        if zhalf == 1: stamp(a, 9)
        T = FA
        for j in range(4):
            for mt in range(2):
                c = ACC + (j*2+mt)*4
                u = [T+0, T+1, T+2, T+3]
                w = [T+4, T+5, T+6, T+7]
                p = T+8 + ((j*2+mt) & 3)*2
                a(f'v_cvt_pk_bf16_f32 v{w[0]}, v{c}, v{c+1}')
                a(f'v_cvt_pk_bf16_f32 v{w[1]}, v{c+2}, v{c+3}')
                unpack4(a, u, w[0], w[1])
                for i in (0, 2): a(f'v_pk_mul_f32 {vr(w[i],2)}, {vr(u[i],2)}, {vr(u[i],2)}')
                for i in (0, 2): a(f'v_pk_fma_f32 {vr(w[i],2)}, {vr(w[i],2)}, s[48:49], {vr(VC0,2)}')
                for i in (0, 2): a(f'v_pk_mul_f32 {vr(w[i],2)}, {vr(w[i],2)}, {vr(u[i],2)}')
                for i in range(4): a(f'v_exp_f32 v{w[i]}, v{w[i]}')
                a('s_nop 0')
                for i in (0, 2): a(f'v_pk_add_f32 {vr(w[i],2)}, {vr(w[i],2)}, 1.0 op_sel_hi:[1,0]')
                for i in range(4): a(f'v_rcp_f32 v{w[i]}, v{w[i]}')
                a('s_nop 0')
                for i in (0, 2): a(f'v_pk_mul_f32 {vr(w[i],2)}, {vr(w[i],2)}, {vr(u[i],2)}')
                a(f'v_cvt_pk_bf16_f32 v{p}, v{w[0]}, v{w[1]}')
                a(f'v_cvt_pk_bf16_f32 v{p+1}, v{w[2]}, v{w[3]}')
                if zhalf == 0:
                    so = 's13' if mt else '0'
                    a(f'buffer_store_dwordx2 {vr(p,2)}, v{VO}, s[40:43], {so} offen offset:{j*512}')
                else:
                    unpack4(a, [c, c+1, c+2, c+3], p, p+1)
        if zhalf == 0:
            a('s_endpgm')
            continue
        stamp(a, 10)
        SM, M2, PR, MU, SD, RS, TT = 32, 40, 48, 64, 72, 12, 20
        VS, VZ = 28, 29
        def acc(j, mt, r): return ACC + (j*2+mt)*4 + r
        rows = [(mt, r) for mt in range(2) for r in range(4)]
        prs = [(mt, r) for mt in range(2) for r in (0, 2)]
        NEG = ' neg_lo:[0,1] neg_hi:[0,1]'
        for (mt, r) in prs:
            k = mt*4+r
            a(f'v_pk_add_f32 {vr(SM+k,2)}, {vr(acc(0,mt,r),2)}, {vr(acc(1,mt,r),2)}')
            a(f'v_pk_add_f32 {vr(TT,2)}, {vr(acc(2,mt,r),2)}, {vr(acc(3,mt,r),2)}')
            a(f'v_pk_add_f32 {vr(SM+k,2)}, {vr(SM+k,2)}, {vr(TT,2)}')
        ror_sum(a, [SM+k for k in range(8)])
        a(f's_mov_b32 s52, {f32bits(1.0/64):#x}')
        for k in range(8):
            a(f'v_mul_f32 v{SM+k}, s52, v{SM+k}')
        for (mt, r) in prs:
            k = mt*4+r
            a(f'v_pk_add_f32 {vr(TT,2)}, {vr(acc(0,mt,r),2)}, {vr(SM+k,2)}{NEG}')
            a(f'v_pk_mul_f32 {vr(M2+k,2)}, {vr(TT,2)}, {vr(TT,2)}')
            for j in range(1, 4):
                a(f'v_pk_add_f32 {vr(TT,2)}, {vr(acc(j,mt,r),2)}, {vr(SM+k,2)}{NEG}')
                a(f'v_pk_fma_f32 {vr(M2+k,2)}, {vr(TT,2)}, {vr(TT,2)}, {vr(M2+k,2)}')
        ror_sum(a, [M2+k for k in range(8)])
        for k in range(8):
            a(f'v_mov_b32 v{PR+2*k}, v{SM+k}')
            a(f'v_mov_b32 v{PR+2*k+1}, v{M2+k}')
        a("""
        s_lshl_b32 s52, s5, 7
        s_lshl_b32 s53, s9, 5
        s_add_u32 s52, s52, s53
        s_lshl_b32 s52, s52, 7
        s_sub_u32 s53, s6, 7
        s_lshl_b32 s53, s53, 1
        s_add_u32 s53, s53, s10
        s_lshl_b32 s53, s53, 3
        s_add_u32 s53, s53, s52
        s_lshl_b32 s55, s5, 4
        """)
        a(f'v_lshlrev_b32 v{VS}, 9, v2')
        a(f'v_add_u32 v{TT}, s53, v{VS}')
        a(f'v_lshl_add_u32 v{VS}, v1, 3, v{VS}')
        a(f'v_add_u32 v{VS}, s52, v{VS}')
        srd(a, 44, 30, 0x40000, WS_ST)
        srd(a, 56, 28, 256)
        a('v_cmp_eq_u32 vcc, 0, v1')
        a(f'v_mov_b32 v{TT+1}, s55')
        a(f'v_mov_b32 v{TT+2}, 1')
        a(f'v_mov_b32 v{TT+3}, s54')
        a('s_mov_b64 exec, vcc')
        for k, (mt, r) in enumerate(rows):
            a(f'buffer_store_dwordx2 {vr(PR+2*k,2)}, v{TT}, s[44:47], 0 offen offset:{(16*mt+r)*128} sc1')
        a('s_mov_b64 exec, -1')
        stamp(a, 11)
        a('s_waitcnt vmcnt(0)')
        stamp(a, 12)
        a('s_barrier')
        stamp(a, 13)
        a('s_cmp_lg_u32 s8, 0')
        a('s_cbranch_scc1 k1_go')
        a('s_mov_b64 exec, 1')
        a(f'buffer_atomic_add v{TT+2}, v{TT+1}, s[56:59], 0 offen')
        a('s_mov_b32 s54, 0')
        a.label('k1_poll')
        a(f'buffer_load_dword v{TT+4}, v{TT+1}, s[56:59], 0 offen sc1')
        a('s_waitcnt vmcnt(0)')
        a(f'v_readfirstlane_b32 s55, v{TT+4}')
        a('s_add_u32 s54, s54, 1')
        a('s_cmp_ge_u32 s55, 7')
        a('s_cbranch_scc1 k1_pdone')
        a('s_sleep 1')
        a('s_cmp_lt_u32 s54, 0x400000')
        a('s_cbranch_scc1 k1_poll')
        a.label('k1_pdone')
        a('s_mov_b64 exec, -1')
        a.label('k1_go')
        a('s_barrier')
        stamp(a, 14)
        for k, (mt, r) in enumerate(rows):
            a(f'buffer_load_dwordx2 {vr(PR+2*k,2)}, v{VS}, s[44:47], 0 offen offset:{(16*mt+r)*128} sc1')
        a("""
        s_sub_u32 s52, s6, 7
        s_lshl_b32 s52, s52, 3
        s_lshl_b32 s53, s10, 2
        s_add_u32 s52, s52, s53
        s_lshl_b32 s52, s52, 16       ; F16*65536
        s_lshl_b32 s53, s5, 2
        s_add_u32 s53, s53, s9
        s_lshl_b32 s53, s53, 10       ; kblk*1024
        s_add_u32 s52, s52, s53
        """)
        a(f'v_lshrrev_b32 v{VZ}, 1, v2')
        a(f'v_lshl_add_u32 v{VZ}, v{VZ}, 4, v1')
        a(f'v_lshlrev_b32 v{VZ}, 4, v{VZ}')
        a(f'v_and_b32 v{TT}, 1, v2')
        a(f'v_lshl_add_u32 v{VZ}, v{TT}, 3, v{VZ}')
        a(f'v_add_u32 v{VZ}, s52, v{VZ}')
        srd(a, 40, 30, ZBYTES, WS_Z2N)
        a('v_cmp_gt_u32 vcc, 14, v1')
        a(f's_mov_b32 s52, {f32bits(1.0/14):#x}')
        a(f's_mov_b32 s53, {f32bits(64.0):#x}')
        a(f's_mov_b32 s54, {f32bits(1.0/896):#x}')
        a('s_waitcnt vmcnt(0)')
        stamp(a, 15)
        for k in range(8):
            a(f'v_cndmask_b32 v{PR+2*k}, 0, v{PR+2*k}, vcc')
            a(f'v_cndmask_b32 v{PR+2*k+1}, 0, v{PR+2*k+1}, vcc')
            a(f'v_mov_b32 v{MU+k}, v{PR+2*k}')
        ror_sum(a, [MU+k for k in range(8)])
        for k in range(8):
            a(f'v_mul_f32 v{MU+k}, s52, v{MU+k}')
            a(f'v_sub_f32 v{TT}, v{PR+2*k}, v{MU+k}')
            a(f'v_mul_f32 v{TT}, v{TT}, v{TT}')
            a(f'v_fma_f32 v{SD+k}, v{TT}, s53, v{PR+2*k+1}')
            a(f'v_cndmask_b32 v{SD+k}, 0, v{SD+k}, vcc')
        ror_sum(a, [SD+k for k in range(8)])
        for k in range(8):
            a(f'v_mul_f32 v{SD+k}, s54, v{SD+k}')
            rbf(a, MU+k)
            rbf(a, SD+k)
            a(f'v_add_f32 v{SD+k}, {f32bits(1e-5):#x}, v{SD+k}')
            rbf(a, SD+k)
            a(f'v_sqrt_f32 v{SD+k}, v{SD+k}')
        a('s_nop 0')
        for k in range(8):
            rbf(a, SD+k)
            a(f'v_rcp_f32 v{RS+k}, v{SD+k}')
        Y = PR
        for j in range(4):
            for mt in range(2):
                for r in (0, 2):
                    a(f'v_pk_add_f32 {vr(Y+r,2)}, {vr(acc(j,mt,r),2)}, {vr(MU+mt*4+r,2)}{NEG}')
                a(f'v_cvt_pk_bf16_f32 v{TT}, v{Y}, v{Y+1}')
                a(f'v_cvt_pk_bf16_f32 v{TT+1}, v{Y+2}, v{Y+3}')
                unpack4(a, [Y+r for r in range(4)], TT, TT+1)
                for r in (0, 2):
                    x, y, k = acc(j,mt,r), Y+r, mt*4+r
                    a(f'v_pk_mul_f32 {vr(x,2)}, {vr(y,2)}, {vr(RS+k,2)}')
                    a(f'v_pk_fma_f32 {vr(y,2)}, {vr(x,2)}, {vr(SD+k,2)}, {vr(y,2)} neg_lo:[1,0,0] neg_hi:[1,0,0]')
                    a(f'v_pk_fma_f32 {vr(x,2)}, {vr(y,2)}, {vr(RS+k,2)}, {vr(x,2)}')
                p = Y + 4 + ((j*2+mt) & 3)*2
                a(f'v_cvt_pk_bf16_f32 v{p}, v{acc(j,mt,0)}, v{acc(j,mt,1)}')
                a(f'v_cvt_pk_bf16_f32 v{p+1}, v{acc(j,mt,2)}, v{acc(j,mt,3)}')
                if mt == 0 and j: a(f's_mov_b32 s52, {j*65536:#x}')
                a(f'buffer_store_dwordx2 {vr(p,2)}, v{VZ}, s[40:43], {"s52" if j else "0"} offen offset:{mt*512}')
        stamp(a, 16)
        stamp_flush(a, 17)
        a('s_endpgm')
    a.label('k1_loader')
    DA, DB = 4, 8
    T0, T1, T2 = 12, 13, 14
    a('s_sub_u32 s9, s8, 8')
    a('s_lshl_b32 s11, s5, 7')
    a('s_lshl_b32 s12, s9, 5')
    a('s_add_u32 s11, s11, s12')
    for e in range(4):
        a(f'v_lshrrev_b32 v{T0}, 3, v0')
        a(f'v_add_u32 v{T0}, {8*e}, v{T0}')
        a(f'v_add_u32 v{T0}, s11, v{T0}')
        a(f'v_mul_u32_u24 v{T0}, 896, v{T0}')
        a(f'v_add_u32 v{T1}, {4*(e&1)}, v2')
        a(f'v_and_b32 v{T2}, 7, v0')
        a(f'v_xor_b32 v{T1}, v{T1}, v{T2}')
        a(f'v_lshl_add_u32 v{DA+e}, v{T1}, 4, v{T0}')
    a('s_lshl_b32 s13, s9, 4')
    a('s_lshl_b32 s14, s6, 8')
    for e in range(4):
        a(f'v_add_u32 v{T0}, {4*e}, v2')
        a(f'v_add_u32 v{T0}, s13, v{T0}')
        a(f'v_mul_u32_u24 v{T0}, 3584, v{T0}')
        a(f'v_or_b32 v{T1}, {((e>>1)&1)<<2}, v2')
        a(f'v_lshrrev_b32 v{T2}, 1, v1')
        a(f'v_xor_b32 v{T1}, v{T1}, v{T2}')
        a(f'v_and_b32 v{T2}, 1, v0')
        a(f'v_lshl_add_u32 v{T1}, v{T1}, 1, v{T2}')
        a(f'v_lshl_add_u32 v{T0}, v{T1}, 4, v{T0}')
        a(f'v_add_u32 v{DB+e}, s14, v{T0}')
    a('s_lshl_b32 s49, s9, 12')
    a('s_waitcnt lgkmcnt(0)')
    srd(a, 32, 16, S*D*2)
    srd(a, 36, 18, D*F*2)
    def issue(st):
        slot = st % NS
        a(f's_movk_i32 s50, {st*128}')
        a(f's_mov_b32 s51, {st*64*3584}')
        for e in range(4):
            dma(a, DA+e, 32, 's50', 's49', slot*32768 + e*1024)
            dma(a, DB+e, 36, 's51', 's49', slot*32768 + 16384 + e*1024)
    loader_loop(a, NST, NS, 8, issue)
    a.label('k1_pf')
    a('s_cmp_ge_u32 s8, 8')
    a(f's_cbranch_scc1 {name}_done')
    a('s_and_b32 s3, s2, 3')
    a('s_lshl_b32 s3, s3, 21')
    a('s_sub_u32 s4, s2, 224')
    a('s_lshr_b32 s5, s4, 3')
    a('s_lshl_b32 s5, s5, 19')
    a('s_add_u32 s3, s3, s5')
    a('s_lshl_b32 s5, s8, 16')
    a('s_add_u32 s3, s3, s5')
    a('s_lshl_b32 s4, s4, 3')
    a('s_add_u32 s4, s4, s8')
    a('s_mul_i32 s4, s4, 3136')
    a('v_lshlrev_b32 v3, 4, v0')
    a('s_lshl_b32 s6, s8, 12')
    a('s_waitcnt lgkmcnt(0)')
    srd(a, 32, 20, S*S*2)
    srd(a, 36, 24, FH*D*2)
    a('s_mov_b32 m0, s6')
    for i in range(4):
        a(f'buffer_load_dwordx4 v3, s[36:39], s4 offen offset:{i*1024} lds')
    for i in range(64):
        if i % 4 == 0 and i: a('s_add_u32 s3, s3, 4096')
        if i == 48: a('s_waitcnt vmcnt(32)')
        a(f'buffer_load_dwordx4 v3, s[32:35], s3 offen offset:{(i%4)*1024} lds')
    a('s_waitcnt vmcnt(0)')
    kernel_tail(a, name)
    return descriptor(name, NV)

def gen_k2(a):
    name = 'k2_kernel'
    kernel_head(a, name, 128)
    lane_setup(a)
    VI, VOUT, VL = 3, 4, 5
    RAW, X, SM, M2, MU, RS, SD, TT = 8, 24, 52, 56, 60, 64, 68, 72
    ST = 80
    a('''
    s_mul_i32 s3, s2, 56
    s_mul_i32 s4, s8, 7
    s_add_u32 s3, s3, s4
    s_lshl_b32 s3, s3, 9          ; (R*56 + 7w)*512
    s_lshl_b32 s5, s4, 16         ; 7w * 64 * 1024
    s_lshr_b32 s6, s2, 1
    s_lshl_b32 s6, s6, 10         ; kblk*1024
    s_add_u32 s5, s5, s6
    s_and_b32 s6, s2, 1
    s_lshl_b32 s6, s6, 9          ; 2(R&1)*16*16
    s_add_u32 s5, s5, s6
    s_mov_b32 s7, 0x10000
    ''')
    a(f'v_lshl_add_u32 v{VI}, v0, 3, s3')
    a(f'v_lshrrev_b32 v{VOUT}, 1, v2')
    a(f'v_lshl_add_u32 v{VOUT}, v{VOUT}, 4, v1')
    a(f'v_lshlrev_b32 v{VOUT}, 4, v{VOUT}')
    a(f'v_and_b32 v{VL}, 1, v2')
    a(f'v_lshl_add_u32 v{VOUT}, v{VL}, 3, v{VOUT}')
    a(f'v_add_u32 v{VOUT}, s5, v{VOUT}')
    a('s_waitcnt lgkmcnt(0)')
    srd(a, 32, 30, ZBYTES, WS_Z2R)
    srd(a, 36, 30, ZBYTES, WS_Z2N)
    for j in range(7):
        a(f'buffer_load_dwordx2 {vr(RAW+2*j,2)}, v{VI}, s[32:35], 0 offen offset:{j*512}')
    a('s_lshl_b32 s9, s8, 3')
    a(f'v_lshlrev_b32 v{VL}, 8, v2')
    a(f'v_add_u32 v6, s9, v{VL}')
    a('v_cmp_eq_u32 s[52:53], 0, v1')
    a('s_waitcnt vmcnt(0)')
    for j in range(7):
        unpack4(a, [X+4*j+r for r in range(4)], RAW+2*j, RAW+2*j+1)
    for r in range(4):
        a(f'v_add_f32 v{SM+r}, v{X+r}, v{X+4+r}')
        for j in range(2, 7):
            a(f'v_add_f32 v{SM+r}, v{SM+r}, v{X+4*j+r}')
    ror_sum(a, [SM+r for r in range(4)])
    a(f's_mov_b32 s10, {f32bits(1.0/112):#x}')
    for r in range(4):
        a(f'v_mul_f32 v{SM+r}, s10, v{SM+r}')
    for r in range(4):
        a(f'v_sub_f32 v{TT}, v{X+r}, v{SM+r}')
        a(f'v_mul_f32 v{M2+r}, v{TT}, v{TT}')
        for j in range(1, 7):
            a(f'v_sub_f32 v{TT}, v{X+4*j+r}, v{SM+r}')
            a(f'v_fmac_f32 v{M2+r}, v{TT}, v{TT}')
    ror_sum(a, [M2+r for r in range(4)])
    for r in range(4):
        a(f'v_mov_b32 v{MU+2*r}, v{SM+r}')
        a(f'v_mov_b32 v{MU+2*r+1}, v{M2+r}')
    a('s_mov_b64 exec, s[52:53]')
    for r in range(4):
        a(f'ds_write_b64 v6, {vr(MU+2*r,2)} offset:{r*64}')
    a('s_mov_b64 exec, -1')
    a('s_waitcnt lgkmcnt(0)')
    a('s_barrier')
    for r in range(4):
        for q in range(4):
            a(f'ds_read_b128 {vr(ST+16*r+4*q,4)}, v{VL} offset:{r*64+q*16}')
    a('s_waitcnt lgkmcnt(0)')
    a(f's_mov_b32 s10, {f32bits(0.125):#x}')
    a(f's_mov_b32 s11, {f32bits(112.0):#x}')
    a(f's_mov_b32 s12, {f32bits(1.0/896):#x}')
    for r in range(4):
        b = ST+16*r
        a(f'v_add_f32 v{MU+r}, v{b}, v{b+2}')
        for w in range(2, 8):
            a(f'v_add_f32 v{MU+r}, v{MU+r}, v{b+2*w}')
        a(f'v_mul_f32 v{MU+r}, s10, v{MU+r}')
        a(f'v_add_f32 v{RS+r}, v{b+1}, v{b+3}')
        for w in range(2, 8):
            a(f'v_add_f32 v{RS+r}, v{RS+r}, v{b+2*w+1}')
        a(f'v_sub_f32 v{TT}, v{b}, v{MU+r}')
        a(f'v_mul_f32 v{TT+1}, v{TT}, v{TT}')
        for w in range(1, 8):
            a(f'v_sub_f32 v{TT}, v{b+2*w}, v{MU+r}')
            a(f'v_fmac_f32 v{TT+1}, v{TT}, v{TT}')
        a(f'v_fma_f32 v{RS+r}, v{TT+1}, s11, v{RS+r}')
        a(f'v_mul_f32 v{SD+r}, s12, v{RS+r}')
    for r in range(4):
        rbf(a, MU+r)
        rbf(a, SD+r)
        a(f'v_add_f32 v{SD+r}, {f32bits(1e-5):#x}, v{SD+r}')
        rbf(a, SD+r)
        a(f'v_sqrt_f32 v{SD+r}, v{SD+r}')
    a('s_nop 0')
    for r in range(4):
        rbf(a, SD+r)
        a(f'v_rcp_f32 v{RS+r}, v{SD+r}')
    Y = ST
    for j in range(7):
        for r in range(4):
            a(f'v_sub_f32 v{Y+4*j+r}, v{X+4*j+r}, v{MU+r}')
        a(f'v_cvt_pk_bf16_f32 v{TT}, v{Y+4*j}, v{Y+4*j+1}')
        a(f'v_cvt_pk_bf16_f32 v{TT+1}, v{Y+4*j+2}, v{Y+4*j+3}')
        unpack4(a, [Y+4*j+r for r in range(4)], TT, TT+1)
        for r in range(4):
            x, y = X+4*j+r, Y+4*j+r
            a(f'v_mul_f32 v{x}, v{y}, v{RS+r}')
            a(f'v_fma_f32 v{y}, -v{x}, v{SD+r}, v{y}')
            a(f'v_fmac_f32 v{x}, v{y}, v{RS+r}')
        a(f'v_cvt_pk_bf16_f32 v{RAW+2*j}, v{X+4*j}, v{X+4*j+1}')
        a(f'v_cvt_pk_bf16_f32 v{RAW+2*j+1}, v{X+4*j+2}, v{X+4*j+3}')
        if j: a(f's_mov_b32 s13, {j*0x10000:#x}')
        a(f'buffer_store_dwordx2 {vr(RAW+2*j,2)}, v{VOUT}, s[36:39], {"s13" if j else "0"} offen')
    kernel_tail(a, name)
    return descriptor(name, 144)


K3_SLOTS, K3_SLOT = 7, 22528
def gen_k3(a):
    name = 'k3_kernel'
    kernel_head(a, name, 256)
    lane_setup(a)
    a("""
    s_and_b32 s3, s2, 7
    s_lshr_b32 s4, s2, 3
    s_and_b32 s5, s3, 3
    s_lshl_b32 s5, s5, 3
    s_and_b32 s6, s4, 7
    s_add_u32 s5, s5, s6          ; tb 0..31
    s_lshr_b32 s6, s3, 2
    s_lshl_b32 s6, s6, 2
    s_lshr_b32 s7, s4, 3
    s_add_u32 s6, s6, s7          ; fb 0..7
    s_mul_i32 s9, s6, 7
    s_cmp_ge_u32 s8, 4
    s_cbranch_scc1 k3_loader
    s_lshl_b32 s10, s8, 1
    s_add_u32 s9, s9, s10
    """)
    NST, NS, SL = 32, K3_SLOTS, K3_SLOT
    VZ, VH, VBI = 4, 5, 6
    T0, T1, T2 = 10, 11, 12
    AAD, BAD = 13, 21
    FA, FB = 28, 60
    ACC = 76
    Z1 = 108
    TE = 28
    NV = 128
    a(f'v_lshrrev_b32 v{T0}, 1, v1')
    a(f'v_xor_b32 v{T0}, v{T0}, v2')
    a(f'v_lshlrev_b32 v{T1}, 7, v1')
    a(f'v_lshl_add_u32 v{AAD}, v{T0}, 4, v{T1}')
    a(f'v_xor_b32 v{AAD+1}, 64, v{AAD}')
    a('s_lshl_b32 s12, s8, 12')
    a('s_add_u32 s12, s12, 8192')
    a(f'v_lshl_add_u32 v{BAD}, v0, 4, s12')
    for k in range(1, 4):
        a(f'v_add_u32 v{AAD+2*k}, {2*k*SL}, v{AAD}')
        a(f'v_add_u32 v{AAD+2*k+1}, {2*k*SL}, v{AAD+1}')
        a(f'v_add_u32 v{BAD+k}, {2*k*SL}, v{BAD}')
    a('s_lshl_b32 s12, s5, 2')
    a('s_mul_i32 s13, s12, 56')
    a('s_add_u32 s13, s13, s9')
    a('s_lshl_b32 s13, s13, 9')
    a(f'v_lshl_add_u32 v{VZ}, v0, 3, s13')
    a(f'v_lshrrev_b32 v{VH}, 1, v2')
    a(f'v_lshl_add_u32 v{VH}, v{VH}, 4, v1')
    a(f'v_lshlrev_b32 v{VH}, 4, v{VH}')
    a(f'v_and_b32 v{T0}, 1, v2')
    a(f'v_lshl_add_u32 v{VH}, v{T0}, 3, v{VH}')
    a('s_mul_i32 s13, s12, 28672')
    a('s_lshl_b32 s14, s9, 9')
    a('s_add_u32 s13, s13, s14')
    a(f'v_add_u32 v{VH}, s13, v{VH}')
    a('s_lshl_b32 s12, s5, 6')
    a(f'v_add_u32 v{T0}, s12, v1')
    a(f'v_lshlrev_b32 v{T0}, 1, v{T0}')
    for i in range(32):
        a(f'v_mov_b32 v{ACC+i}, 0')
    a('s_waitcnt lgkmcnt(0)')
    srd(a, 40, 30, ZBYTES, WS_Z1)
    srd(a, 44, 30, ZBYTES, WS_H)
    srd(a, 56, 22, S*2)
    stamp_init(a, 2, 4)
    for mt in range(4):
        a(f'buffer_load_ushort v{VBI+mt}, v{T0}, s[56:59], 0 offen offset:{mt*32}')
    a('s_cmp_eq_u32 s8, 3')
    a('s_cbranch_scc1 k3_w3')
    for NT in (2, 1):
        if NT == 1: a.label('k3_w3')
        for mt in range(4):
            a(f's_mov_b32 s13, {mt*28672}')
            for jj in range(NT):
                a(f'buffer_load_dwordx2 {vr(Z1+(jj*4+mt)*2,2)}, v{VZ}, s[40:43], s13 offen offset:{jj*512}')
        def reads(st, u):
            slot = st % NS
            sset, soff = slot >> 1, (slot & 1)*SL
            for mt in range(4):
                a(f'ds_read_b128 {vr(FA+u*16+mt*4,4)}, v{AAD+2*sset+u} offset:{soff+mt*2048}')
            for jj in range(NT):
                a(f'ds_read_b128 {vr(FB+u*8+jj*4,4)}, v{BAD+sset} offset:{soff+(jj*2+u)*1024}')
        def mfmas(buf):
            for jj in range(NT):
                for mt in range(4):
                    c = ACC + (jj*4+mt)*4
                    a(f'v_mfma_f32_16x16x32_bf16 {vr(c,4)}, {vr(FB+buf*8+jj*4,4)}, {vr(FA+buf*16+mt*4,4)}, {vr(c,4)}')
        compute_loop(a, NST, reads, mfmas, 4+NT, (lambda st: stamp(a, 2+st//2) if st % 2 == 0 else None) if NT == 2 else None)
        if NT == 2: stamp(a, 18)
        a('s_waitcnt vmcnt(0)')
        for mt in range(4):
            a(f'v_lshlrev_b32 v{VBI+mt}, 16, v{VBI+mt}')
        for jj in range(NT):
            for mt in range(4):
                c = ACC + (jj*4+mt)*4
                u = [TE+0, TE+1, TE+2, TE+3]
                w = [TE+4, TE+5]
                z = [TE+6, TE+7, TE+8, TE+9]
                p = TE+10 + (mt & 3)*2
                zz = Z1+(jj*4+mt)*2
                a(f'v_cvt_pk_bf16_f32 v{w[0]}, v{c}, v{c+1}')
                a(f'v_cvt_pk_bf16_f32 v{w[1]}, v{c+2}, v{c+3}')
                unpack4(a, u, w[0], w[1])
                for i in range(4): a(f'v_add_f32 v{u[i]}, v{u[i]}, v{VBI+mt}')
                a(f'v_cvt_pk_bf16_f32 v{w[0]}, v{u[0]}, v{u[1]}')
                a(f'v_cvt_pk_bf16_f32 v{w[1]}, v{u[2]}, v{u[3]}')
                unpack4(a, u, w[0], w[1])
                unpack4(a, z, zz, zz+1)
                for i in range(4): a(f'v_mul_f32 v{u[i]}, v{u[i]}, v{z[i]}')
                a(f'v_cvt_pk_bf16_f32 v{p}, v{u[0]}, v{u[1]}')
                a(f'v_cvt_pk_bf16_f32 v{p+1}, v{u[2]}, v{u[3]}')
                a(f's_mov_b32 s13, {mt*28672}')
                a(f'buffer_store_dwordx2 {vr(p,2)}, v{VH}, s[44:47], s13 offen offset:{jj*512}')
        if NT == 2:
            stamp(a, 19)
            stamp_flush(a, 20)
        a('s_endpgm')
    a.label('k3_loader')
    DA, DB = 4, 6
    T0, T1, T2 = 8, 9, 10
    a('s_sub_u32 s10, s8, 4')
    a('s_lshl_b32 s11, s5, 6')
    a('s_lshl_b32 s12, s10, 4')
    a('s_add_u32 s11, s11, s12')
    for e in range(2):
        a(f'v_lshrrev_b32 v{T0}, 3, v0')
        a(f'v_add_u32 v{T0}, {8*e}, v{T0}')
        a(f'v_add_u32 v{T0}, s11, v{T0}')
        a(f'v_lshlrev_b32 v{T0}, 12, v{T0}')
        a(f'v_add_u32 v{T1}, {4*e}, v2')
        a(f'v_and_b32 v{T2}, 7, v0')
        a(f'v_xor_b32 v{T1}, v{T1}, v{T2}')
        a(f'v_lshl_add_u32 v{DA+e}, v{T1}, 4, v{T0}')
    a('s_lshl_b32 s12, s9, 16')
    a(f'v_lshl_add_u32 v{DB}, v0, 4, s12')
    a('s_waitcnt lgkmcnt(0)')
    srd(a, 32, 20, S*S*2)
    srd(a, 36, 30, ZBYTES, WS_Z2N)
    lists = ([0,1,2,3], [4,5,6,7], [8,9,10], [11,12,13])
    for q in range(1, 4):
        a(f's_cmp_eq_u32 s10, {q}')
        a(f's_cbranch_scc1 k3_ld{q}')
    for q in range(4):
        if q: a.label(f'k3_ld{q}')
        def issue(st):
            slot = st % NS
            a(f's_movk_i32 s50, {st*128}')
            for e in range(2):
                dma(a, DA+e, 32, 's50', '0', slot*SL + (2*q+e)*1024)
            for idx in lists[q]:
                a(f's_mov_b32 s51, {(idx>>1)*65536 + (2*st + (idx&1))*1024}')
                dma(a, DB, 36, 's51', '0', slot*SL + 8192 + idx*1024)
        loader_loop(a, NST, NS, 2+len(lists[q]), issue)
    kernel_tail(a, name)
    return descriptor(name, NV)

K4_SLOTS = 10
def gen_k4(a):
    name = 'k4_kernel'
    NST, NS = 14, K4_SLOTS
    kernel_head(a, name, 224)
    lane_setup(a)
    a("""
    s_and_b32 s3, s2, 7
    s_lshr_b32 s4, s2, 3
    s_lshl_b32 s5, s3, 2
    s_and_b32 s6, s4, 3
    s_add_u32 s5, s5, s6          ; tb 0..31
    s_lshr_b32 s6, s4, 2          ; db 0..6
    s_lshl_b32 s9, s6, 7
    s_cmp_ge_u32 s8, 4
    s_cbranch_scc1 k4_loader
    s_lshl_b32 s10, s5, 6
    s_lshl_b32 s11, s8, 4
    s_add_u32 s10, s10, s11
    """)
    VO = 4
    AAD, BAD = 5, 8
    t0, t1, t2 = 20, 21, 22
    FA, FB, ACC = 24, 32, 64
    NV = 80
    a(f'v_add_u32 v{VO}, s10, v1')
    a(f'v_mul_u32_u24 v{VO}, 896, v{VO}')
    a(f'v_lshl_add_u32 v{VO}, v2, 3, v{VO}')
    a(f'v_add_u32 v{VO}, s9, v{VO}')
    a('s_lshl_b32 s11, s8, 11')
    a(f'v_lshl_add_u32 v{AAD}, v0, 4, s11')
    a(f'v_lshrrev_b32 v{t0}, 2, v1')
    a(f'v_lshl_add_u32 v{t0}, v2, 2, v{t0}')
    a(f'v_bfe_u32 v{t1}, v{t0}, 1, 2')
    a(f'v_and_b32 v{t2}, 3, v1')
    a(f'v_lshlrev_b32 v{t2}, 3, v{t2}')
    a(f'v_lshl_add_u32 v{t2}, v{t0}, 7, v{t2}')
    a(f'v_add_u32 v{t2}, 8192, v{t2}')
    for j in range(4):
        a(f'v_xor_b32 v{t0}, {j}, v{t1}')
        a(f'v_lshl_add_u32 v{BAD+j}, v{t0}, 5, v{t2}')
    for k in (1, 2):
        a(f'v_add_u32 v{AAD+k}, {k*65536}, v{AAD}')
        for j in range(4): a(f'v_add_u32 v{BAD+4*k+j}, {k*65536}, v{BAD+j}')
    for i in range(16):
        a(f'v_mov_b32 v{ACC+i}, 0')
    a('s_waitcnt lgkmcnt(0)')
    srd(a, 40, 26, S*D*2)
    stamp_init(a, 3, 4)
    def reads(st, u):
        slot = st % NS
        sset, soff = slot >> 2, (slot & 3)*16384
        a(f'ds_read_b128 {vr(FA+u*4,4)}, v{AAD+sset} offset:{soff+u*1024}')
        for j in range(4):
            for h in range(2):
                a(f'ds_read_b64_tr_b16 {vr(FB+u*16+j*4+h*2,2)}, v{BAD+4*sset+j} offset:{soff+u*4096+h*2048}')
    def mfmas(buf):
        for j in range(4):
            c = ACC + j*4
            a(f'v_mfma_f32_16x16x32_bf16 {vr(c,4)}, {vr(FB+buf*16+j*4,4)}, {vr(FA+buf*4,4)}, {vr(c,4)}')
    compute_loop(a, NST, reads, mfmas, 9, lambda st: stamp(a, 2+st))
    stamp(a, 16)
    for j in range(4):
        c = ACC + j*4
        p = FA + j*2
        a(f'v_cvt_pk_bf16_f32 v{p}, v{c}, v{c+1}')
        a(f'v_cvt_pk_bf16_f32 v{p+1}, v{c+2}, v{c+3}')
        a(f'buffer_store_dwordx2 {vr(p,2)}, v{VO}, s[40:43], 0 offen offset:{j*32}')
    stamp(a, 17)
    stamp_flush(a, 18)
    a('s_endpgm')
    a.label('k4_loader')
    DA, DB = 4, 5
    t0, t1, t2 = 6, 7, 8
    a('s_sub_u32 s10, s8, 4')
    a('s_lshl_b32 s11, s5, 2')
    a('s_add_u32 s11, s11, s10')
    a('s_mul_i32 s11, s11, 28672')
    a(f'v_lshl_add_u32 v{DA}, v0, 4, s11')
    a('s_lshl_b32 s12, s10, 3')
    a(f'v_lshrrev_b32 v{t0}, 3, v0')
    a(f'v_add_u32 v{t0}, s12, v{t0}')
    a(f'v_bfe_u32 v{t1}, v{t0}, 1, 2')
    a(f'v_bfe_u32 v{t2}, v0, 1, 2')
    a(f'v_xor_b32 v{t1}, v{t1}, v{t2}')
    a(f'v_and_b32 v{t2}, 1, v0')
    a(f'v_lshl_add_u32 v{t1}, v{t1}, 1, v{t2}')
    a(f'v_lshlrev_b32 v{t1}, 4, v{t1}')
    a(f'v_bfe_u32 v{t2}, v{t0}, 2, 2')
    a(f'v_lshlrev_b32 v{t2}, 3, v{t2}')
    a(f'v_and_b32 v{DB}, 3, v{t0}')
    a(f'v_add_u32 v{t2}, v{t2}, v{DB}')
    a(f'v_lshrrev_b32 v{t0}, 4, v{t0}')
    a(f'v_lshl_add_u32 v{t2}, v{t0}, 2, v{t2}')
    a(f'v_mul_u32_u24 v{t2}, 896, v{t2}')
    a(f'v_add3_u32 v{DB}, v{t2}, v{t1}, s9')
    a('s_lshl_b32 s48, s10, 11')
    a('s_lshl_b32 s49, s10, 10')
    a('s_waitcnt lgkmcnt(0)')
    srd(a, 32, 30, ZBYTES, WS_H)
    srd(a, 36, 24, FH*D*2)
    def issue(st):
        slot = st % NS
        for kb in range(2):
            a(f's_movk_i32 s50, {st*2048 + kb*1024}')
            dma(a, DA, 32, 's50', 's48', slot*16384 + kb*1024)
            a(f's_mov_b32 s51, {(64*st + 32*kb)*896}')
            dma(a, DB, 36, 's51', 's49', slot*16384 + 8192 + kb*4096)
    loader_loop(a, NST, NS, 4, issue)
    kernel_tail(a, name)
    return descriptor(name, NV)

HEADER = open('standalone__mixer_gmlp__prompt.s.ref').read().split('; Override')[0]

def main():
    global STAMP
    if '--stamp' in sys.argv:
        STAMP = True; sys.argv.remove('--stamp')
    a = Asm()
    d = [gen_k1(a), gen_k3(a), gen_k4(a)]
    out = HEADER
    out += f'; @launch kernel=k1_kernel grid=(256,1,1) block=(768,1,1) lds={K1_SLOTS*32768}\n'
    out += f'; @launch kernel=k3_kernel grid=(256,1,1) block=(512,1,1) lds={K3_SLOTS*K3_SLOT}\n'
    out += f'; @launch kernel=k4_kernel grid=(224,1,1) block=(512,1,1) lds={K4_SLOTS*16384}\n'
    out += '.amdgcn_target "amdgcn-amd-amdhsa--gfx950"\n.text\n'
    out += a.text()
    out += '.section .rodata,"a"\n'
    for x in d:
        out += '.p2align 6\n' + x
    path = sys.argv[1] if len(sys.argv) > 1 else 'standalone__mixer_gmlp__prompt.s'
    open(path, 'w').write(out)

main()
```

```python
import math, struct, sys

S, D, F, FH = 2048, 448, 1792, 896
WS_Z1, WS_Z2R, WS_Z2N, WS_H, WS_ST = 0x0, 0x400000, 0x800000, 0xC00000, 0x1800000
ZBYTES = S * FH * 2
STAMP = False
import os
X_NOCOMP = os.environ.get('X_NOCOMP')
X_NOA = os.environ.get('X_NOA')
X_NOB = os.environ.get('X_NOB')

def f32bits(x):
    return struct.unpack('<I', struct.pack('<f', x))[0]

class Asm:
    def __init__(self):
        self.l = []
    def __call__(self, s):
        for line in s.strip('\n').split('\n'):
            self.l.append('    ' + line.strip())
    def label(self, s):
        self.l.append(s + ':')
    def raw(self, s):
        self.l.append(s)
    def text(self):
        return '\n'.join(self.l) + '\n'

def vr(b, n): return f'v[{b}:{b+n-1}]'
def ar(b, n): return f'a[{b}:{b+n-1}]'

def srd(a, sd, sbase, nbytes, off=0):
    if off:
        a(f's_add_u32 s{sd}, s{sbase}, {off:#x}')
        a(f's_addc_u32 s{sd+1}, s{sbase+1}, 0')
        a(f's_and_b32 s{sd+1}, s{sd+1}, 0xffff')
    else:
        a(f's_mov_b32 s{sd}, s{sbase}')
        a(f's_and_b32 s{sd+1}, s{sbase+1}, 0xffff')
    a(f's_mov_b32 s{sd+2}, {nbytes:#x}')
    a(f's_mov_b32 s{sd+3}, 0x00020000')

def kernel_head(a, name, nwg):
    a.raw(f'.globl {name}')
    a.raw('.p2align 8')
    a.raw(f'.type {name},@function')
    a.label(name)
    a(f's_cmp_ge_u32 s2, {nwg}')
    a(f's_cbranch_scc1 {name}_done')
    a('s_load_dwordx16 s[16:31], s[0:1], 0')

def kernel_tail(a, name):
    a.label(f'{name}_done')
    a('s_endpgm')

def descriptor(name, vgpr, agpr=0, sgpr=100):
    if STAMP: vgpr = max(vgpr, 256) if vgpr > 128 or agpr else max(vgpr, 128)
    acc = (vgpr + 3) // 4 * 4
    return f'''.amdhsa_kernel {name}
  .amdhsa_next_free_vgpr {acc + agpr if agpr else vgpr}
  .amdhsa_next_free_sgpr {sgpr}
  .amdhsa_accum_offset {acc}
  .amdhsa_group_segment_fixed_size 0
  .amdhsa_kernarg_size 64
  .amdhsa_user_sgpr_count 2
  .amdhsa_user_sgpr_kernarg_segment_ptr 1
  .amdhsa_system_sgpr_workgroup_id_x 1
.end_amdhsa_kernel
'''

def stamp_init(a, kid, wpw=4):
    if not STAMP: return
    a(f's_add_u32 s60, s30, {0x1000000 + kid*0x100000:#x}')
    a('s_addc_u32 s61, s31, 0')
    a('s_and_b32 s61, s61, 0xffff')
    a('s_mov_b32 s62, 0x100000')
    a('s_mov_b32 s63, 0x00020000')
    a(f's_mul_i32 s64, s2, {wpw}')
    a('s_add_u32 s64, s64, s8')
    a('s_lshl_b32 s64, s64, 8')
    stamp(a, 0, real=True); stamp(a, 1)
def stamp(a, idx, real=False):
    if not STAMP: return
    a('s_memrealtime s[66:67]' if real else 's_memtime s[66:67]')
    a('s_waitcnt lgkmcnt(0)')
    a(f's_mov_b32 s{70+idx}, s66')
def stamp_flush(a, n, vt=126):
    if not STAMP: return
    a('s_waitcnt vmcnt(0)')
    stamp(a, n, real=False)
    stamp(a, n+1, real=True)
    a(f'v_mov_b32 v{vt+1}, 0')
    for i in range(n+2):
        a(f'v_mov_b32 v{vt}, s{70+i}')
        a(f'buffer_store_dword v{vt}, v{vt+1}, s[60:63], s64 offen offset:{i*4}')

def lane_setup(a):
    a('v_lshrrev_b32 v1, 6, v0')
    a('v_and_b32 v0, 63, v0')
    a('v_readfirstlane_b32 s8, v1')
    a('v_and_b32 v1, 15, v0')
    a('v_lshrrev_b32 v2, 4, v0')

GC0 = -2.0 * math.log2(math.e) * math.sqrt(2.0 / math.pi)
GC1 = GC0 * 0.044715

def unpack4(a, u, lo, hi):
    a(f'v_lshlrev_b32 v{u[0]}, 16, v{lo}')
    a(f'v_and_b32 v{u[1]}, 0xffff0000, v{lo}')
    a(f'v_lshlrev_b32 v{u[2]}, 16, v{hi}')
    a(f'v_and_b32 v{u[3]}, 0xffff0000, v{hi}')


_uid = [0]
def loader_loop(a, NST, NSLOT, per, issue, P=3):
    sched = []
    nxt = min(P, NSLOT, NST)
    for st in range(NST):
        w = per*(nxt-1-st)
        lim = min(NST-1, st-1+NSLOT if st >= 1 else NSLOT-1)
        n = 0
        while n < 2 and nxt <= lim:
            nxt += 1; n += 1
        sched.append((w, n))
    for _ in range(min(P, NSLOT, NST)):
        issue()
    st = 0
    while st < NST:
        run = 1
        while st+run < NST and sched[st+run] == sched[st]: run += 1
        w, n = sched[st]
        if run >= 3:
            _uid[0] += 1
            lab = f'ldl{_uid[0]}'
            a(f's_movk_i32 s92, {run}')
            a.label(lab)
            a(f's_waitcnt vmcnt({w})')
            a('s_barrier')
            for _ in range(n): issue()
            a('s_sub_u32 s92, s92, 1')
            a('s_cmp_lg_u32 s92, 0')
            a(f's_cbranch_scc1 {lab}')
            st += run
        else:
            a(f's_waitcnt vmcnt({w})')
            a('s_barrier')
            for _ in range(n): issue()
            st += 1
    a('s_endpgm')

def slot_adv(a, sreg, SL, NS):
    a(f's_add_u32 s{sreg}, s{sreg}, {SL}')
    a(f's_cmp_ge_u32 s{sreg}, {NS*SL}')
    a(f's_cselect_b32 s{sreg}, 0, s{sreg}')

def compute_loop(a, NST, SL, NS, addrs, reads, mfmas, nreads):
    for (d, b) in addrs:
        a(f'v_mov_b32 v{d}, v{b}')
    a('s_barrier')
    reads(0)
    reads(1)
    a(f's_waitcnt lgkmcnt({nreads})')
    mfmas(0)
    a('s_waitcnt lgkmcnt(0)')
    _uid[0] += 1
    lab = f'cl{_uid[0]}'
    a(f's_movk_i32 s91, {NST-1}')
    a('s_mov_b32 s90, 0')
    a.label(lab)
    slot_adv(a, 90, SL, NS)
    for (d, b) in addrs:
        a(f'v_add_u32 v{d}, s90, v{b}')
    a('s_barrier')
    reads(0)
    mfmas(1)
    reads(1)
    a(f's_waitcnt lgkmcnt({nreads})')
    mfmas(0)
    a('s_sub_u32 s91, s91, 1')
    a('s_cmp_lg_u32 s91, 0')
    a('s_waitcnt lgkmcnt(0)')
    a(f's_cbranch_scc1 {lab}')
    mfmas(1)
    a('s_nop 7')
    a('s_nop 7')

def dma(a, voff, srdn, soff, m0base, m0imm):
    a(f's_add_u32 m0, {m0base}, {m0imm}')
    a('s_nop 0')
    a(f'buffer_load_dwordx4 v{voff}, s[{srdn}:{srdn+3}], {soff} offen lds')

def ror_sum(a, regs):
    for sh in (8, 4, 2, 1):
        a('s_nop 1')
        for v in regs:
            a(f'v_add_f32_dpp v{v}, v{v}, v{v} row_ror:{sh} row_mask:0xf bank_mask:0xf')

def rbf(a, v):
    a(f'v_cvt_pk_bf16_f32 v{v}, v{v}, v{v}')
    a(f'v_lshlrev_b32 v{v}, 16, v{v}')

K1_SLOTS = 5
def gen_k1(a):
    name = 'k1_kernel'
    NS, NST = K1_SLOTS, 7
    kernel_head(a, name, 256)
    lane_setup(a)
    a('s_cmp_ge_u32 s2, 224')
    a('s_cbranch_scc1 k1_pf')
    a("""
    s_and_b32 s3, s2, 7
    s_lshr_b32 s4, s2, 3
    s_and_b32 s5, s3, 3
    s_lshl_b32 s5, s5, 2
    s_and_b32 s6, s4, 3
    s_add_u32 s5, s5, s6          ; rb 0..15
    s_lshr_b32 s7, s4, 2          ; c7 0..6
    s_lshr_b32 s6, s3, 2          ; xh 0/1
    s_add_u32 s14, s6, 3
    s_lshl_b32 s15, s6, 2
    s_sub_u32 s15, s15, s14
    s_mul_i32 s6, s6, 3
    s_add_u32 s6, s6, 7
    s_cmp_lt_u32 s7, s14
    s_cselect_b32 s6, s6, s15
    s_add_u32 s6, s6, s7          ; cb 0..13
    s_cmp_ge_u32 s8, 8
    s_cbranch_scc1 k1_loader
    s_and_b32 s9, s8, 3           ; mw
    s_lshr_b32 s10, s8, 2         ; nw
    """)
    VO, VC0 = 3, 4
    T0, T1, T2 = 9, 10, 11
    AAD, BAD = 12, 18
    FA, FB = 32, 48
    ACC = 80
    NV = 112
    a('s_lshl_b32 s12, s9, 12')
    a(f'v_lshrrev_b32 v{T0}, 1, v1')
    a(f'v_xor_b32 v{T0}, v{T0}, v2')
    a(f'v_lshlrev_b32 v{T1}, 7, v1')
    a(f'v_add_u32 v{T1}, s12, v{T1}')
    a(f'v_lshl_add_u32 v{AAD}, v{T0}, 4, v{T1}')
    a(f'v_xor_b32 v{AAD+1}, 64, v{AAD}')
    a(f'v_lshrrev_b32 v{T0}, 2, v1')
    a(f'v_and_b32 v{T1}, 1, v2')
    a(f'v_lshl_add_u32 v{T1}, v{T1}, 2, v{T0}')
    a(f'v_lshl_add_u32 v{T0}, v2, 3, v{T0}')
    a(f'v_lshlrev_b32 v{T0}, 8, v{T0}')
    a(f'v_and_b32 v{T2}, 3, v1')
    a(f'v_lshl_add_u32 v{T0}, v{T2}, 3, v{T0}')
    a(f'v_add_u32 v{T0}, 16384, v{T0}')
    a('s_lshl_b32 s12, s10, 2')
    for j in range(4):
        a(f's_add_u32 s13, s12, {j}')
        a(f'v_xor_b32 v{T2}, s13, v{T1}')
        a(f'v_lshl_add_u32 v{BAD+j}, v{T2}, 5, v{T0}')
    a("""
    s_lshl_b32 s12, s5, 3
    s_lshl_b32 s13, s9, 1
    s_add_u32 s12, s12, s13
    s_mul_i32 s12, s12, 56
    s_cmp_ge_u32 s6, 7
    s_cselect_b32 s13, 7, 0
    s_cselect_b32 s15, 0x400000, 0
    s_sub_u32 s13, s6, s13
    s_lshl_b32 s13, s13, 3
    s_add_u32 s12, s12, s13
    s_lshl_b32 s13, s10, 2
    s_add_u32 s12, s12, s13
    s_lshl_b32 s12, s12, 9
    s_add_u32 s12, s12, s15
    s_movk_i32 s13, 28672
    """)
    a(f'v_lshl_add_u32 v{VO}, v0, 3, s12')
    a(f'v_mov_b32 v{VC0}, {f32bits(GC0):#x}')
    a(f'v_mov_b32 v{VC0+1}, {f32bits(GC0):#x}')
    a(f's_mov_b32 s48, {f32bits(GC1):#x}')
    a(f's_mov_b32 s49, {f32bits(GC1):#x}')
    for i in range(32):
        a(f'v_mov_b32 v{ACC+i}, 0')
    a('s_waitcnt lgkmcnt(0)')
    srd(a, 40, 30, 0x800000)
    stamp_init(a, 0, 8)
    a('s_cmp_ge_u32 s6, 7')
    a('s_cbranch_scc1 k1_z2')
    def reads(uu):
        for mt in range(2):
            a(f'ds_read_b128 {vr(FA+uu*8+mt*4,4)}, v{AAD+2+uu} offset:{mt*2048}')
        for j in range(4):
            for h in range(2):
                a(f'ds_read_b64_tr_b16 {vr(FB+uu*16+j*4+h*2,2)}, v{BAD+4+j} offset:{uu*8192+h*1024}')
    k1addrs = [(AAD+2+i, AAD+i) for i in range(2)] + [(BAD+4+j, BAD+j) for j in range(4)]
    for zhalf in range(2):
        if zhalf: a.label('k1_z2')
        def mfmas(buf):
            for j in range(4):
                for mt in range(2):
                    c = ACC + (j*2+mt)*4
                    fb, fa = vr(FB+buf*16+j*4,4), vr(FA+buf*8+mt*4,4)
                    if zhalf == 0:
                        a(f'v_mfma_f32_16x16x32_bf16 {vr(c,4)}, {fb}, {fa}, {vr(c,4)}')
                    else:
                        a(f'v_mfma_f32_16x16x32_bf16 {vr(c,4)}, {fa}, {fb}, {vr(c,4)}')
        compute_loop(a, NST, 32768, NS, k1addrs, reads, mfmas, 10)
        if zhalf == 1: stamp(a, 9)
        T = FA
        for j in range(4):
            for mt in range(2):
                c = ACC + (j*2+mt)*4
                u = [T+0, T+1, T+2, T+3]
                w = [T+4, T+5, T+6, T+7]
                p = T+8 + ((j*2+mt) & 3)*2
                a(f'v_cvt_pk_bf16_f32 v{w[0]}, v{c}, v{c+1}')
                a(f'v_cvt_pk_bf16_f32 v{w[1]}, v{c+2}, v{c+3}')
                unpack4(a, u, w[0], w[1])
                for i in (0, 2): a(f'v_pk_mul_f32 {vr(w[i],2)}, {vr(u[i],2)}, {vr(u[i],2)}')
                for i in (0, 2): a(f'v_pk_fma_f32 {vr(w[i],2)}, {vr(w[i],2)}, s[48:49], {vr(VC0,2)}')
                for i in (0, 2): a(f'v_pk_mul_f32 {vr(w[i],2)}, {vr(w[i],2)}, {vr(u[i],2)}')
                for i in range(4): a(f'v_exp_f32 v{w[i]}, v{w[i]}')
                a('s_nop 0')
                for i in (0, 2): a(f'v_pk_add_f32 {vr(w[i],2)}, {vr(w[i],2)}, 1.0 op_sel_hi:[1,0]')
                for i in range(4): a(f'v_rcp_f32 v{w[i]}, v{w[i]}')
                a('s_nop 0')
                for i in (0, 2): a(f'v_pk_mul_f32 {vr(w[i],2)}, {vr(w[i],2)}, {vr(u[i],2)}')
                a(f'v_cvt_pk_bf16_f32 v{p}, v{w[0]}, v{w[1]}')
                a(f'v_cvt_pk_bf16_f32 v{p+1}, v{w[2]}, v{w[3]}')
                if zhalf == 0:
                    so = 's13' if mt else '0'
                    a(f'buffer_store_dwordx2 {vr(p,2)}, v{VO}, s[40:43], {so} offen offset:{j*512}')
                else:
                    unpack4(a, [c, c+1, c+2, c+3], p, p+1)
        if zhalf == 0:
            a('s_endpgm')
            continue
        stamp(a, 10)
        SM, M2, PR, MU, SD, RS, TT = 32, 40, 48, 64, 72, 12, 20
        VS, VZ = 28, 29
        def acc(j, mt, r): return ACC + (j*2+mt)*4 + r
        rows = [(mt, r) for mt in range(2) for r in range(4)]
        prs = [(mt, r) for mt in range(2) for r in (0, 2)]
        NEG = ' neg_lo:[0,1] neg_hi:[0,1]'
        for (mt, r) in prs:
            k = mt*4+r
            a(f'v_pk_add_f32 {vr(SM+k,2)}, {vr(acc(0,mt,r),2)}, {vr(acc(1,mt,r),2)}')
            a(f'v_pk_add_f32 {vr(TT,2)}, {vr(acc(2,mt,r),2)}, {vr(acc(3,mt,r),2)}')
            a(f'v_pk_add_f32 {vr(SM+k,2)}, {vr(SM+k,2)}, {vr(TT,2)}')
        ror_sum(a, [SM+k for k in range(8)])
        a(f's_mov_b32 s52, {f32bits(1.0/64):#x}')
        for k in range(8):
            a(f'v_mul_f32 v{SM+k}, s52, v{SM+k}')
        for (mt, r) in prs:
            k = mt*4+r
            a(f'v_pk_add_f32 {vr(TT,2)}, {vr(acc(0,mt,r),2)}, {vr(SM+k,2)}{NEG}')
            a(f'v_pk_mul_f32 {vr(M2+k,2)}, {vr(TT,2)}, {vr(TT,2)}')
            for j in range(1, 4):
                a(f'v_pk_add_f32 {vr(TT,2)}, {vr(acc(j,mt,r),2)}, {vr(SM+k,2)}{NEG}')
                a(f'v_pk_fma_f32 {vr(M2+k,2)}, {vr(TT,2)}, {vr(TT,2)}, {vr(M2+k,2)}')
        ror_sum(a, [M2+k for k in range(8)])
        for k in range(8):
            a(f'v_mov_b32 v{PR+2*k}, v{SM+k}')
            a(f'v_mov_b32 v{PR+2*k+1}, v{M2+k}')
        a("""
        s_lshl_b32 s52, s5, 7
        s_lshl_b32 s53, s9, 5
        s_add_u32 s52, s52, s53
        s_lshl_b32 s52, s52, 7
        s_sub_u32 s53, s6, 7
        s_lshl_b32 s53, s53, 1
        s_add_u32 s53, s53, s10
        s_lshl_b32 s53, s53, 3
        s_add_u32 s53, s53, s52
        s_lshl_b32 s55, s5, 4
        """)
        a(f'v_lshlrev_b32 v{VS}, 9, v2')
        a(f'v_add_u32 v{TT}, s53, v{VS}')
        a(f'v_lshl_add_u32 v{VS}, v1, 3, v{VS}')
        a(f'v_add_u32 v{VS}, s52, v{VS}')
        srd(a, 44, 30, 0x40000, WS_ST)
        srd(a, 56, 28, 256)
        a('v_cmp_eq_u32 vcc, 0, v1')
        a(f'v_mov_b32 v{TT+1}, s55')
        a(f'v_mov_b32 v{TT+2}, 1')
        a(f'v_mov_b32 v{TT+3}, s54')
        a('s_mov_b64 exec, vcc')
        for k, (mt, r) in enumerate(rows):
            a(f'buffer_store_dwordx2 {vr(PR+2*k,2)}, v{TT}, s[44:47], 0 offen offset:{(16*mt+r)*128} sc1')
        a('s_mov_b64 exec, -1')
        stamp(a, 11)
        a('s_waitcnt vmcnt(0)')
        stamp(a, 12)
        a('s_barrier')
        stamp(a, 13)
        a('s_cmp_lg_u32 s8, 0')
        a('s_cbranch_scc1 k1_go')
        a('s_mov_b64 exec, 1')
        a(f'buffer_atomic_add v{TT+2}, v{TT+1}, s[56:59], 0 offen')
        a('s_mov_b32 s54, 0')
        a.label('k1_poll')
        a(f'buffer_load_dword v{TT+4}, v{TT+1}, s[56:59], 0 offen sc1')
        a('s_waitcnt vmcnt(0)')
        a(f'v_readfirstlane_b32 s55, v{TT+4}')
        a('s_add_u32 s54, s54, 1')
        a('s_cmp_ge_u32 s55, 7')
        a('s_cbranch_scc1 k1_pdone')
        a('s_sleep 1')
        a('s_cmp_lt_u32 s54, 0x400000')
        a('s_cbranch_scc1 k1_poll')
        a.label('k1_pdone')
        a('s_mov_b64 exec, -1')
        a.label('k1_go')
        a('s_barrier')
        stamp(a, 14)
        for k, (mt, r) in enumerate(rows):
            a(f'buffer_load_dwordx2 {vr(PR+2*k,2)}, v{VS}, s[44:47], 0 offen offset:{(16*mt+r)*128} sc1')
        a("""
        s_sub_u32 s52, s6, 7
        s_lshl_b32 s52, s52, 3
        s_lshl_b32 s53, s10, 2
        s_add_u32 s52, s52, s53
        s_lshl_b32 s52, s52, 16       ; F16*65536
        s_lshl_b32 s53, s5, 2
        s_add_u32 s53, s53, s9
        s_lshl_b32 s53, s53, 10       ; kblk*1024
        s_add_u32 s52, s52, s53
        """)
        a(f'v_lshrrev_b32 v{VZ}, 1, v2')
        a(f'v_lshl_add_u32 v{VZ}, v{VZ}, 4, v1')
        a(f'v_lshlrev_b32 v{VZ}, 4, v{VZ}')
        a(f'v_and_b32 v{TT}, 1, v2')
        a(f'v_lshl_add_u32 v{VZ}, v{TT}, 3, v{VZ}')
        a(f'v_add_u32 v{VZ}, s52, v{VZ}')
        srd(a, 40, 30, ZBYTES, WS_Z2N)
        a('v_cmp_gt_u32 vcc, 14, v1')
        a(f's_mov_b32 s52, {f32bits(1.0/14):#x}')
        a(f's_mov_b32 s53, {f32bits(64.0):#x}')
        a(f's_mov_b32 s54, {f32bits(1.0/896):#x}')
        a('s_waitcnt vmcnt(0)')
        stamp(a, 15)
        for k in range(8):
            a(f'v_cndmask_b32 v{PR+2*k}, 0, v{PR+2*k}, vcc')
            a(f'v_cndmask_b32 v{PR+2*k+1}, 0, v{PR+2*k+1}, vcc')
            a(f'v_mov_b32 v{MU+k}, v{PR+2*k}')
        ror_sum(a, [MU+k for k in range(8)])
        for k in range(8):
            a(f'v_mul_f32 v{MU+k}, s52, v{MU+k}')
            a(f'v_sub_f32 v{TT}, v{PR+2*k}, v{MU+k}')
            a(f'v_mul_f32 v{TT}, v{TT}, v{TT}')
            a(f'v_fma_f32 v{SD+k}, v{TT}, s53, v{PR+2*k+1}')
            a(f'v_cndmask_b32 v{SD+k}, 0, v{SD+k}, vcc')
        ror_sum(a, [SD+k for k in range(8)])
        for k in range(8):
            a(f'v_mul_f32 v{SD+k}, s54, v{SD+k}')
            rbf(a, MU+k)
            rbf(a, SD+k)
            a(f'v_add_f32 v{SD+k}, {f32bits(1e-5):#x}, v{SD+k}')
            rbf(a, SD+k)
            a(f'v_sqrt_f32 v{SD+k}, v{SD+k}')
        a('s_nop 0')
        for k in range(8):
            rbf(a, SD+k)
            a(f'v_rcp_f32 v{RS+k}, v{SD+k}')
        Y = PR
        for j in range(4):
            for mt in range(2):
                for r in (0, 2):
                    a(f'v_pk_add_f32 {vr(Y+r,2)}, {vr(acc(j,mt,r),2)}, {vr(MU+mt*4+r,2)}{NEG}')
                a(f'v_cvt_pk_bf16_f32 v{TT}, v{Y}, v{Y+1}')
                a(f'v_cvt_pk_bf16_f32 v{TT+1}, v{Y+2}, v{Y+3}')
                unpack4(a, [Y+r for r in range(4)], TT, TT+1)
                for r in (0, 2):
                    x, y, k = acc(j,mt,r), Y+r, mt*4+r
                    a(f'v_pk_mul_f32 {vr(x,2)}, {vr(y,2)}, {vr(RS+k,2)}')
                    a(f'v_pk_fma_f32 {vr(y,2)}, {vr(x,2)}, {vr(SD+k,2)}, {vr(y,2)} neg_lo:[1,0,0] neg_hi:[1,0,0]')
                    a(f'v_pk_fma_f32 {vr(x,2)}, {vr(y,2)}, {vr(RS+k,2)}, {vr(x,2)}')
                p = Y + 4 + ((j*2+mt) & 3)*2
                a(f'v_cvt_pk_bf16_f32 v{p}, v{acc(j,mt,0)}, v{acc(j,mt,1)}')
                a(f'v_cvt_pk_bf16_f32 v{p+1}, v{acc(j,mt,2)}, v{acc(j,mt,3)}')
                if mt == 0 and j: a(f's_mov_b32 s52, {j*65536:#x}')
                a(f'buffer_store_dwordx2 {vr(p,2)}, v{VZ}, s[40:43], {"s52" if j else "0"} offen offset:{mt*512}')
        stamp(a, 16)
        stamp_flush(a, 17)
        a('s_endpgm')
    a.label('k1_loader')
    DA, DB = 4, 8
    T0, T1, T2 = 12, 13, 14
    a('s_sub_u32 s9, s8, 8')
    a('s_lshl_b32 s11, s5, 7')
    a('s_lshl_b32 s12, s9, 5')
    a('s_add_u32 s11, s11, s12')
    for e in range(4):
        a(f'v_lshrrev_b32 v{T0}, 3, v0')
        a(f'v_add_u32 v{T0}, {8*e}, v{T0}')
        a(f'v_add_u32 v{T0}, s11, v{T0}')
        a(f'v_mul_u32_u24 v{T0}, 896, v{T0}')
        a(f'v_add_u32 v{T1}, {4*(e&1)}, v2')
        a(f'v_and_b32 v{T2}, 7, v0')
        a(f'v_xor_b32 v{T1}, v{T1}, v{T2}')
        a(f'v_lshl_add_u32 v{DA+e}, v{T1}, 4, v{T0}')
    a('s_lshl_b32 s13, s9, 4')
    a('s_lshl_b32 s14, s6, 8')
    for e in range(4):
        a(f'v_add_u32 v{T0}, {4*e}, v2')
        a(f'v_add_u32 v{T0}, s13, v{T0}')
        a(f'v_mul_u32_u24 v{T0}, 3584, v{T0}')
        a(f'v_or_b32 v{T1}, {((e>>1)&1)<<2}, v2')
        a(f'v_lshrrev_b32 v{T2}, 1, v1')
        a(f'v_xor_b32 v{T1}, v{T1}, v{T2}')
        a(f'v_and_b32 v{T2}, 1, v0')
        a(f'v_lshl_add_u32 v{T1}, v{T1}, 1, v{T2}')
        a(f'v_lshl_add_u32 v{T0}, v{T1}, 4, v{T0}')
        a(f'v_add_u32 v{DB+e}, s14, v{T0}')
    a('s_lshl_b32 s49, s9, 12')
    a('s_waitcnt lgkmcnt(0)')
    srd(a, 32, 16, S*D*2)
    srd(a, 36, 18, D*F*2)
    a('s_mov_b32 s50, 0')
    a('s_mov_b32 s51, 0')
    a('s_mov_b32 s93, 0')
    def issue():
        a('s_add_u32 s94, s93, s49')
        for e in range(4):
            dma(a, DA+e, 32, 's50', 's94', e*1024)
            dma(a, DB+e, 36, 's51', 's94', 16384 + e*1024)
        a('s_add_u32 s50, s50, 128')
        a(f's_add_u32 s51, s51, {64*3584}')
        slot_adv(a, 93, 32768, NS)
    loader_loop(a, NST, NS, 8, issue)
    a.label('k1_pf')
    a('s_cmp_ge_u32 s8, 8')
    a(f's_cbranch_scc1 {name}_done')
    a('s_and_b32 s3, s2, 3')
    a('s_lshl_b32 s3, s3, 21')
    a('s_sub_u32 s4, s2, 224')
    a('s_lshr_b32 s5, s4, 3')
    a('s_lshl_b32 s5, s5, 19')
    a('s_add_u32 s3, s3, s5')
    a('s_lshl_b32 s5, s8, 16')
    a('s_add_u32 s3, s3, s5')
    a('s_lshl_b32 s4, s4, 3')
    a('s_add_u32 s4, s4, s8')
    a('s_mul_i32 s4, s4, 3136')
    a('v_lshlrev_b32 v3, 4, v0')
    a('s_lshl_b32 s6, s8, 12')
    a('s_waitcnt lgkmcnt(0)')
    srd(a, 32, 20, S*S*2)
    srd(a, 36, 24, FH*D*2)
    a('s_mov_b32 m0, s6')
    for i in range(4):
        a(f'buffer_load_dwordx4 v3, s[36:39], s4 offen offset:{i*1024} lds')
    for i in range(64):
        if i % 4 == 0 and i: a('s_add_u32 s3, s3, 4096')
        if i == 48: a('s_waitcnt vmcnt(32)')
        a(f'buffer_load_dwordx4 v3, s[32:35], s3 offen offset:{(i%4)*1024} lds')
    a('s_waitcnt vmcnt(0)')
    kernel_tail(a, name)
    return descriptor(name, NV)

def gen_k2(a):
    name = 'k2_kernel'
    kernel_head(a, name, 128)
    lane_setup(a)
    VI, VOUT, VL = 3, 4, 5
    RAW, X, SM, M2, MU, RS, SD, TT = 8, 24, 52, 56, 60, 64, 68, 72
    ST = 80
    a('''
    s_mul_i32 s3, s2, 56
    s_mul_i32 s4, s8, 7
    s_add_u32 s3, s3, s4
    s_lshl_b32 s3, s3, 9          ; (R*56 + 7w)*512
    s_lshl_b32 s5, s4, 16         ; 7w * 64 * 1024
    s_lshr_b32 s6, s2, 1
    s_lshl_b32 s6, s6, 10         ; kblk*1024
    s_add_u32 s5, s5, s6
    s_and_b32 s6, s2, 1
    s_lshl_b32 s6, s6, 9          ; 2(R&1)*16*16
    s_add_u32 s5, s5, s6
    s_mov_b32 s7, 0x10000
    ''')
    a(f'v_lshl_add_u32 v{VI}, v0, 3, s3')
    a(f'v_lshrrev_b32 v{VOUT}, 1, v2')
    a(f'v_lshl_add_u32 v{VOUT}, v{VOUT}, 4, v1')
    a(f'v_lshlrev_b32 v{VOUT}, 4, v{VOUT}')
    a(f'v_and_b32 v{VL}, 1, v2')
    a(f'v_lshl_add_u32 v{VOUT}, v{VL}, 3, v{VOUT}')
    a(f'v_add_u32 v{VOUT}, s5, v{VOUT}')
    a('s_waitcnt lgkmcnt(0)')
    srd(a, 32, 30, ZBYTES, WS_Z2R)
    srd(a, 36, 30, ZBYTES, WS_Z2N)
    for j in range(7):
        a(f'buffer_load_dwordx2 {vr(RAW+2*j,2)}, v{VI}, s[32:35], 0 offen offset:{j*512}')
    a('s_lshl_b32 s9, s8, 3')
    a(f'v_lshlrev_b32 v{VL}, 8, v2')
    a(f'v_add_u32 v6, s9, v{VL}')
    a('v_cmp_eq_u32 s[52:53], 0, v1')
    a('s_waitcnt vmcnt(0)')
    for j in range(7):
        unpack4(a, [X+4*j+r for r in range(4)], RAW+2*j, RAW+2*j+1)
    for r in range(4):
        a(f'v_add_f32 v{SM+r}, v{X+r}, v{X+4+r}')
        for j in range(2, 7):
            a(f'v_add_f32 v{SM+r}, v{SM+r}, v{X+4*j+r}')
    ror_sum(a, [SM+r for r in range(4)])
    a(f's_mov_b32 s10, {f32bits(1.0/112):#x}')
    for r in range(4):
        a(f'v_mul_f32 v{SM+r}, s10, v{SM+r}')
    for r in range(4):
        a(f'v_sub_f32 v{TT}, v{X+r}, v{SM+r}')
        a(f'v_mul_f32 v{M2+r}, v{TT}, v{TT}')
        for j in range(1, 7):
            a(f'v_sub_f32 v{TT}, v{X+4*j+r}, v{SM+r}')
            a(f'v_fmac_f32 v{M2+r}, v{TT}, v{TT}')
    ror_sum(a, [M2+r for r in range(4)])
    for r in range(4):
        a(f'v_mov_b32 v{MU+2*r}, v{SM+r}')
        a(f'v_mov_b32 v{MU+2*r+1}, v{M2+r}')
    a('s_mov_b64 exec, s[52:53]')
    for r in range(4):
        a(f'ds_write_b64 v6, {vr(MU+2*r,2)} offset:{r*64}')
    a('s_mov_b64 exec, -1')
    a('s_waitcnt lgkmcnt(0)')
    a('s_barrier')
    for r in range(4):
        for q in range(4):
            a(f'ds_read_b128 {vr(ST+16*r+4*q,4)}, v{VL} offset:{r*64+q*16}')
    a('s_waitcnt lgkmcnt(0)')
    a(f's_mov_b32 s10, {f32bits(0.125):#x}')
    a(f's_mov_b32 s11, {f32bits(112.0):#x}')
    a(f's_mov_b32 s12, {f32bits(1.0/896):#x}')
    for r in range(4):
        b = ST+16*r
        a(f'v_add_f32 v{MU+r}, v{b}, v{b+2}')
        for w in range(2, 8):
            a(f'v_add_f32 v{MU+r}, v{MU+r}, v{b+2*w}')
        a(f'v_mul_f32 v{MU+r}, s10, v{MU+r}')
        a(f'v_add_f32 v{RS+r}, v{b+1}, v{b+3}')
        for w in range(2, 8):
            a(f'v_add_f32 v{RS+r}, v{RS+r}, v{b+2*w+1}')
        a(f'v_sub_f32 v{TT}, v{b}, v{MU+r}')
        a(f'v_mul_f32 v{TT+1}, v{TT}, v{TT}')
        for w in range(1, 8):
            a(f'v_sub_f32 v{TT}, v{b+2*w}, v{MU+r}')
            a(f'v_fmac_f32 v{TT+1}, v{TT}, v{TT}')
        a(f'v_fma_f32 v{RS+r}, v{TT+1}, s11, v{RS+r}')
        a(f'v_mul_f32 v{SD+r}, s12, v{RS+r}')
    for r in range(4):
        rbf(a, MU+r)
        rbf(a, SD+r)
        a(f'v_add_f32 v{SD+r}, {f32bits(1e-5):#x}, v{SD+r}')
        rbf(a, SD+r)
        a(f'v_sqrt_f32 v{SD+r}, v{SD+r}')
    a('s_nop 0')
    for r in range(4):
        rbf(a, SD+r)
        a(f'v_rcp_f32 v{RS+r}, v{SD+r}')
    Y = ST
    for j in range(7):
        for r in range(4):
            a(f'v_sub_f32 v{Y+4*j+r}, v{X+4*j+r}, v{MU+r}')
        a(f'v_cvt_pk_bf16_f32 v{TT}, v{Y+4*j}, v{Y+4*j+1}')
        a(f'v_cvt_pk_bf16_f32 v{TT+1}, v{Y+4*j+2}, v{Y+4*j+3}')
        unpack4(a, [Y+4*j+r for r in range(4)], TT, TT+1)
        for r in range(4):
            x, y = X+4*j+r, Y+4*j+r
            a(f'v_mul_f32 v{x}, v{y}, v{RS+r}')
            a(f'v_fma_f32 v{y}, -v{x}, v{SD+r}, v{y}')
            a(f'v_fmac_f32 v{x}, v{y}, v{RS+r}')
        a(f'v_cvt_pk_bf16_f32 v{RAW+2*j}, v{X+4*j}, v{X+4*j+1}')
        a(f'v_cvt_pk_bf16_f32 v{RAW+2*j+1}, v{X+4*j+2}, v{X+4*j+3}')
        if j: a(f's_mov_b32 s13, {j*0x10000:#x}')
        a(f'buffer_store_dwordx2 {vr(RAW+2*j,2)}, v{VOUT}, s[36:39], {"s13" if j else "0"} offen')
    kernel_tail(a, name)
    return descriptor(name, 144)


K3_SLOTS, K3_SLOT = 7, 22528
def gen_k3(a):
    name = 'k3_kernel'
    kernel_head(a, name, 256)
    lane_setup(a)
    a("""
    s_and_b32 s3, s2, 7
    s_lshr_b32 s4, s2, 3
    s_and_b32 s5, s3, 3
    s_lshl_b32 s5, s5, 3
    s_and_b32 s6, s4, 7
    s_add_u32 s5, s5, s6          ; tb 0..31
    s_lshr_b32 s6, s3, 2
    s_lshl_b32 s6, s6, 2
    s_lshr_b32 s7, s4, 3
    s_add_u32 s6, s6, s7          ; fb 0..7
    s_mul_i32 s9, s6, 7
    s_cmp_ge_u32 s8, 4
    s_cbranch_scc1 k3_loader
    s_lshl_b32 s10, s8, 1
    s_add_u32 s9, s9, s10
    """)
    NST, NS, SL = 32, K3_SLOTS, K3_SLOT
    VZ, VH, VBI = 4, 5, 6
    T0, T1, T2 = 10, 11, 12
    AAD, BAD = 13, 21
    FA, FB = 28, 60
    ACC = 76
    Z1 = 108
    TE = 28
    NV = 128
    a(f'v_lshrrev_b32 v{T0}, 1, v1')
    a(f'v_xor_b32 v{T0}, v{T0}, v2')
    a(f'v_lshlrev_b32 v{T1}, 7, v1')
    a(f'v_lshl_add_u32 v{AAD}, v{T0}, 4, v{T1}')
    a(f'v_xor_b32 v{AAD+1}, 64, v{AAD}')
    a('s_lshl_b32 s12, s8, 12')
    a('s_add_u32 s12, s12, 8192')
    a(f'v_lshl_add_u32 v{BAD}, v0, 4, s12')
    a('s_lshl_b32 s12, s5, 2')
    a('s_mul_i32 s13, s12, 56')
    a('s_add_u32 s13, s13, s9')
    a('s_lshl_b32 s13, s13, 9')
    a(f'v_lshl_add_u32 v{VZ}, v0, 3, s13')
    a(f'v_lshrrev_b32 v{VH}, 1, v2')
    a(f'v_lshl_add_u32 v{VH}, v{VH}, 4, v1')
    a(f'v_lshlrev_b32 v{VH}, 4, v{VH}')
    a(f'v_and_b32 v{T0}, 1, v2')
    a(f'v_lshl_add_u32 v{VH}, v{T0}, 3, v{VH}')
    a('s_mul_i32 s13, s12, 28672')
    a('s_lshl_b32 s14, s9, 9')
    a('s_add_u32 s13, s13, s14')
    a(f'v_add_u32 v{VH}, s13, v{VH}')
    a('s_lshl_b32 s12, s5, 6')
    a(f'v_add_u32 v{T0}, s12, v1')
    a(f'v_lshlrev_b32 v{T0}, 1, v{T0}')
    for i in range(32):
        a(f'v_mov_b32 v{ACC+i}, 0')
    a('s_waitcnt lgkmcnt(0)')
    srd(a, 40, 30, ZBYTES, WS_Z1)
    srd(a, 44, 30, ZBYTES, WS_H)
    srd(a, 56, 22, S*2)
    stamp_init(a, 2, 4)
    for mt in range(4):
        a(f'buffer_load_ushort v{VBI+mt}, v{T0}, s[56:59], 0 offen offset:{mt*32}')
    a('s_cmp_eq_u32 s8, 3')
    a('s_cbranch_scc1 k3_w3')
    for NT in (2, 1):
        if NT == 1: a.label('k3_w3')
        for mt in range(4):
            a(f's_mov_b32 s13, {mt*28672}')
            for jj in range(NT):
                a(f'buffer_load_dwordx2 {vr(Z1+(jj*4+mt)*2,2)}, v{VZ}, s[40:43], s13 offen offset:{jj*512}')
        def reads(u):
            for mt in range(4):
                a(f'ds_read_b128 {vr(FA+u*16+mt*4,4)}, v{AAD+2+u} offset:{mt*2048}')
            for jj in range(NT):
                a(f'ds_read_b128 {vr(FB+u*8+jj*4,4)}, v{BAD+1} offset:{(jj*2+u)*1024}')
        def mfmas(buf):
            for jj in range(NT):
                for mt in range(4):
                    c = ACC + (jj*4+mt)*4
                    a(f'v_mfma_f32_16x16x32_bf16 {vr(c,4)}, {vr(FB+buf*8+jj*4,4)}, {vr(FA+buf*16+mt*4,4)}, {vr(c,4)}')
        compute_loop(a, NST, SL, NS, [(AAD+2, AAD), (AAD+3, AAD+1), (BAD+1, BAD)], reads, mfmas, 4+NT)
        if NT == 2: stamp(a, 18)
        a('s_waitcnt vmcnt(0)')
        for mt in range(4):
            a(f'v_lshlrev_b32 v{VBI+mt}, 16, v{VBI+mt}')
        for jj in range(NT):
            for mt in range(4):
                c = ACC + (jj*4+mt)*4
                u = [TE+0, TE+1, TE+2, TE+3]
                w = [TE+4, TE+5]
                z = [TE+6, TE+7, TE+8, TE+9]
                p = TE+10 + (mt & 3)*2
                zz = Z1+(jj*4+mt)*2
                a(f'v_cvt_pk_bf16_f32 v{w[0]}, v{c}, v{c+1}')
                a(f'v_cvt_pk_bf16_f32 v{w[1]}, v{c+2}, v{c+3}')
                unpack4(a, u, w[0], w[1])
                for i in range(4): a(f'v_add_f32 v{u[i]}, v{u[i]}, v{VBI+mt}')
                a(f'v_cvt_pk_bf16_f32 v{w[0]}, v{u[0]}, v{u[1]}')
                a(f'v_cvt_pk_bf16_f32 v{w[1]}, v{u[2]}, v{u[3]}')
                unpack4(a, u, w[0], w[1])
                unpack4(a, z, zz, zz+1)
                for i in range(4): a(f'v_mul_f32 v{u[i]}, v{u[i]}, v{z[i]}')
                a(f'v_cvt_pk_bf16_f32 v{p}, v{u[0]}, v{u[1]}')
                a(f'v_cvt_pk_bf16_f32 v{p+1}, v{u[2]}, v{u[3]}')
                a(f's_mov_b32 s13, {mt*28672}')
                a(f'buffer_store_dwordx2 {vr(p,2)}, v{VH}, s[44:47], s13 offen offset:{jj*512}')
        if NT == 2:
            stamp(a, 19)
            stamp_flush(a, 20)
        a('s_endpgm')
    a.label('k3_loader')
    DA, DB = 4, 6
    T0, T1, T2 = 8, 9, 10
    a('s_sub_u32 s10, s8, 4')
    a('s_lshl_b32 s11, s5, 6')
    a('s_lshl_b32 s12, s10, 4')
    a('s_add_u32 s11, s11, s12')
    for e in range(2):
        a(f'v_lshrrev_b32 v{T0}, 3, v0')
        a(f'v_add_u32 v{T0}, {8*e}, v{T0}')
        a(f'v_add_u32 v{T0}, s11, v{T0}')
        a(f'v_lshlrev_b32 v{T0}, 12, v{T0}')
        a(f'v_add_u32 v{T1}, {4*e}, v2')
        a(f'v_and_b32 v{T2}, 7, v0')
        a(f'v_xor_b32 v{T1}, v{T1}, v{T2}')
        a(f'v_lshl_add_u32 v{DA+e}, v{T1}, 4, v{T0}')
    a('s_lshl_b32 s12, s9, 16')
    a(f'v_lshl_add_u32 v{DB}, v0, 4, s12')
    a('s_waitcnt lgkmcnt(0)')
    srd(a, 32, 20, S*S*2)
    srd(a, 36, 30, ZBYTES, WS_Z2N)
    lists = ([0,1,2,3], [4,5,6,7], [8,9,10], [11,12,13])
    for q in range(1, 4):
        a(f's_cmp_eq_u32 s10, {q}')
        a(f's_cbranch_scc1 k3_ld{q}')
    for q in range(4):
        if q: a.label(f'k3_ld{q}')
        a('s_mov_b32 s50, 0')
        a('s_mov_b32 s52, 0')
        a('s_mov_b32 s93, 0')
        def issue():
            for e in range(2):
                dma(a, DA+e, 32, 's50', 's93', (2*q+e)*1024)
            for idx in lists[q]:
                a(f's_add_u32 s51, s52, {(idx>>1)*65536 + (idx&1)*1024}')
                dma(a, DB, 36, 's51', 's93', 8192 + idx*1024)
            a('s_add_u32 s50, s50, 128')
            a('s_add_u32 s52, s52, 2048')
            slot_adv(a, 93, SL, NS)
        loader_loop(a, NST, NS, 2+len(lists[q]), issue)
    kernel_tail(a, name)
    return descriptor(name, NV)

K4_SLOTS = 10
def gen_k4(a):
    name = 'k4_kernel'
    NST, NS = 14, K4_SLOTS
    kernel_head(a, name, 224)
    lane_setup(a)
    a("""
    s_and_b32 s3, s2, 7
    s_lshr_b32 s4, s2, 3
    s_lshl_b32 s5, s3, 2
    s_and_b32 s6, s4, 3
    s_add_u32 s5, s5, s6          ; tb 0..31
    s_lshr_b32 s6, s4, 2          ; db 0..6
    s_lshl_b32 s9, s6, 7
    s_cmp_ge_u32 s8, 4
    s_cbranch_scc1 k4_loader
    s_lshl_b32 s10, s5, 6
    s_lshl_b32 s11, s8, 4
    s_add_u32 s10, s10, s11
    """)
    VO = 4
    AAD, BAD = 5, 8
    t0, t1, t2 = 20, 21, 22
    FA, FB, ACC = 24, 32, 64
    NV = 80
    a(f'v_add_u32 v{VO}, s10, v1')
    a(f'v_mul_u32_u24 v{VO}, 896, v{VO}')
    a(f'v_lshl_add_u32 v{VO}, v2, 3, v{VO}')
    a(f'v_add_u32 v{VO}, s9, v{VO}')
    a('s_lshl_b32 s11, s8, 11')
    a(f'v_lshl_add_u32 v{AAD}, v0, 4, s11')
    a(f'v_lshrrev_b32 v{t0}, 2, v1')
    a(f'v_lshl_add_u32 v{t0}, v2, 2, v{t0}')
    a(f'v_bfe_u32 v{t1}, v{t0}, 1, 2')
    a(f'v_and_b32 v{t2}, 3, v1')
    a(f'v_lshlrev_b32 v{t2}, 3, v{t2}')
    a(f'v_lshl_add_u32 v{t2}, v{t0}, 7, v{t2}')
    a(f'v_add_u32 v{t2}, 8192, v{t2}')
    for j in range(4):
        a(f'v_xor_b32 v{t0}, {j}, v{t1}')
        a(f'v_lshl_add_u32 v{BAD+j}, v{t0}, 5, v{t2}')
    for i in range(16):
        a(f'v_mov_b32 v{ACC+i}, 0')
    a('s_waitcnt lgkmcnt(0)')
    srd(a, 40, 26, S*D*2)
    stamp_init(a, 3, 4)
    def reads(u):
        a(f'ds_read_b128 {vr(FA+u*4,4)}, v{AAD+1} offset:{u*1024}')
        for j in range(4):
            for h in range(2):
                a(f'ds_read_b64_tr_b16 {vr(FB+u*16+j*4+h*2,2)}, v{BAD+4+j} offset:{u*4096+h*2048}')
    def mfmas(buf):
        for j in range(4):
            c = ACC + j*4
            a(f'v_mfma_f32_16x16x32_bf16 {vr(c,4)}, {vr(FB+buf*16+j*4,4)}, {vr(FA+buf*4,4)}, {vr(c,4)}')
    compute_loop(a, NST, 16384, NS, [(AAD+1, AAD)] + [(BAD+4+j, BAD+j) for j in range(4)], reads, mfmas, 9)
    stamp(a, 16)
    for j in range(4):
        c = ACC + j*4
        p = FA + j*2
        a(f'v_cvt_pk_bf16_f32 v{p}, v{c}, v{c+1}')
        a(f'v_cvt_pk_bf16_f32 v{p+1}, v{c+2}, v{c+3}')
        a(f'buffer_store_dwordx2 {vr(p,2)}, v{VO}, s[40:43], 0 offen offset:{j*32}')
    stamp(a, 17)
    stamp_flush(a, 18)
    a('s_endpgm')
    a.label('k4_loader')
    DA, DB = 4, 5
    t0, t1, t2 = 6, 7, 8
    a('s_sub_u32 s10, s8, 4')
    a('s_lshl_b32 s11, s5, 2')
    a('s_add_u32 s11, s11, s10')
    a('s_mul_i32 s11, s11, 28672')
    a(f'v_lshl_add_u32 v{DA}, v0, 4, s11')
    a('s_lshl_b32 s12, s10, 3')
    a(f'v_lshrrev_b32 v{t0}, 3, v0')
    a(f'v_add_u32 v{t0}, s12, v{t0}')
    a(f'v_bfe_u32 v{t1}, v{t0}, 1, 2')
    a(f'v_bfe_u32 v{t2}, v0, 1, 2')
    a(f'v_xor_b32 v{t1}, v{t1}, v{t2}')
    a(f'v_and_b32 v{t2}, 1, v0')
    a(f'v_lshl_add_u32 v{t1}, v{t1}, 1, v{t2}')
    a(f'v_lshlrev_b32 v{t1}, 4, v{t1}')
    a(f'v_bfe_u32 v{t2}, v{t0}, 2, 2')
    a(f'v_lshlrev_b32 v{t2}, 3, v{t2}')
    a(f'v_and_b32 v{DB}, 3, v{t0}')
    a(f'v_add_u32 v{t2}, v{t2}, v{DB}')
    a(f'v_lshrrev_b32 v{t0}, 4, v{t0}')
    a(f'v_lshl_add_u32 v{t2}, v{t0}, 2, v{t2}')
    a(f'v_mul_u32_u24 v{t2}, 896, v{t2}')
    a(f'v_add3_u32 v{DB}, v{t2}, v{t1}, s9')
    a('s_lshl_b32 s48, s10, 11')
    a('s_lshl_b32 s49, s10, 10')
    a('s_waitcnt lgkmcnt(0)')
    srd(a, 32, 30, ZBYTES, WS_H)
    srd(a, 36, 24, FH*D*2)
    a('s_mov_b32 s50, 0')
    a('s_mov_b32 s51, 0')
    a('s_mov_b32 s93, 0')
    def issue():
        a('s_add_u32 s94, s93, s48')
        a('s_add_u32 s95, s93, s49')
        for kb in range(2):
            dma(a, DA, 32, 's50', 's94', kb*1024)
            dma(a, DB, 36, 's51', 's95', 8192 + kb*4096)
            a('s_add_u32 s50, s50, 1024')
            a(f's_add_u32 s51, s51, {32*896}')
        slot_adv(a, 93, 16384, NS)
    loader_loop(a, NST, NS, 4, issue)
    kernel_tail(a, name)
    return descriptor(name, NV)

HEADER = open('standalone__mixer_gmlp__prompt.s.ref').read().split('; Override')[0]

def main():
    global STAMP
    if '--stamp' in sys.argv:
        STAMP = True; sys.argv.remove('--stamp')
    a = Asm()
    d = [gen_k1(a), gen_k3(a), gen_k4(a)]
    out = HEADER
    out += f'; @launch kernel=k1_kernel grid=(256,1,1) block=(768,1,1) lds={K1_SLOTS*32768}\n'
    out += f'; @launch kernel=k3_kernel grid=(256,1,1) block=(512,1,1) lds={K3_SLOTS*K3_SLOT}\n'
    out += f'; @launch kernel=k4_kernel grid=(224,1,1) block=(512,1,1) lds={K4_SLOTS*16384}\n'
    out += '.amdgcn_target "amdgcn-amd-amdhsa--gfx950"\n.text\n'
    out += a.text()
    out += '.section .rodata,"a"\n'
    for x in d:
        out += '.p2align 6\n' + x
    path = sys.argv[1] if len(sys.argv) > 1 else 'standalone__mixer_gmlp__prompt.s'
    open(path, 'w').write(out)

main()
```

```python
import math, struct, sys

S, D, F, FH = 2048, 448, 1792, 896
WS_Z1, WS_Z2R, WS_Z2N, WS_H = 0x0, 0x400000, 0x800000, 0xC00000
ZBYTES = S * FH * 2
STAMP = False
import os
X_NOCOMP = os.environ.get('X_NOCOMP')
X_NOA = os.environ.get('X_NOA')
X_NOB = os.environ.get('X_NOB')

def f32bits(x):
    return struct.unpack('<I', struct.pack('<f', x))[0]

class Asm:
    def __init__(self):
        self.l = []
    def __call__(self, s):
        for line in s.strip('\n').split('\n'):
            self.l.append('    ' + line.strip())
    def label(self, s):
        self.l.append(s + ':')
    def raw(self, s):
        self.l.append(s)
    def text(self):
        return '\n'.join(self.l) + '\n'

def vr(b, n): return f'v[{b}:{b+n-1}]'
def ar(b, n): return f'a[{b}:{b+n-1}]'

def srd(a, sd, sbase, nbytes, off=0):
    if off:
        a(f's_add_u32 s{sd}, s{sbase}, {off:#x}')
        a(f's_addc_u32 s{sd+1}, s{sbase+1}, 0')
        a(f's_and_b32 s{sd+1}, s{sd+1}, 0xffff')
    else:
        a(f's_mov_b32 s{sd}, s{sbase}')
        a(f's_and_b32 s{sd+1}, s{sbase+1}, 0xffff')
    a(f's_mov_b32 s{sd+2}, {nbytes:#x}')
    a(f's_mov_b32 s{sd+3}, 0x00020000')

def kernel_head(a, name, nwg):
    a.raw(f'.globl {name}')
    a.raw('.p2align 8')
    a.raw(f'.type {name},@function')
    a.label(name)
    a(f's_cmp_ge_u32 s2, {nwg}')
    a(f's_cbranch_scc1 {name}_done')
    a('s_load_dwordx16 s[16:31], s[0:1], 0')

def kernel_tail(a, name):
    a.label(f'{name}_done')
    a('s_endpgm')

def descriptor(name, vgpr, agpr=0, sgpr=100):
    if STAMP: vgpr = max(vgpr, 256) if vgpr > 128 or agpr else max(vgpr, 128)
    acc = (vgpr + 3) // 4 * 4
    return f'''.amdhsa_kernel {name}
  .amdhsa_next_free_vgpr {acc + agpr if agpr else vgpr}
  .amdhsa_next_free_sgpr {sgpr}
  .amdhsa_accum_offset {acc}
  .amdhsa_group_segment_fixed_size 0
  .amdhsa_kernarg_size 64
  .amdhsa_user_sgpr_count 2
  .amdhsa_user_sgpr_kernarg_segment_ptr 1
  .amdhsa_system_sgpr_workgroup_id_x 1
.end_amdhsa_kernel
'''

def stamp_init(a, kid, wpw=4):
    if not STAMP: return
    a(f's_add_u32 s60, s30, {0x1000000 + kid*0x100000:#x}')
    a('s_addc_u32 s61, s31, 0')
    a('s_and_b32 s61, s61, 0xffff')
    a('s_mov_b32 s62, 0x100000')
    a('s_mov_b32 s63, 0x00020000')
    a(f's_mul_i32 s64, s2, {wpw}')
    a('s_add_u32 s64, s64, s8')
    a('s_lshl_b32 s64, s64, 8')
    stamp(a, 0, real=True); stamp(a, 1)
def stamp(a, idx, real=False):
    if not STAMP: return
    a('s_memrealtime s[66:67]' if real else 's_memtime s[66:67]')
    a('s_waitcnt lgkmcnt(0)')
    a(f's_mov_b32 s{70+idx}, s66')
def stamp_flush(a, n, vt=126):
    if not STAMP: return
    a('s_waitcnt vmcnt(0)')
    stamp(a, n, real=False)
    stamp(a, n+1, real=True)
    a(f'v_mov_b32 v{vt+1}, 0')
    for i in range(n+2):
        a(f'v_mov_b32 v{vt}, s{70+i}')
        a(f'buffer_store_dword v{vt}, v{vt+1}, s[60:63], s64 offen offset:{i*4}')

def lane_setup(a):
    a('v_lshrrev_b32 v1, 6, v0')
    a('v_and_b32 v0, 63, v0')
    a('v_readfirstlane_b32 s8, v1')
    a('v_and_b32 v1, 15, v0')
    a('v_lshrrev_b32 v2, 4, v0')

GC0 = -2.0 * math.log2(math.e) * math.sqrt(2.0 / math.pi)
GC1 = GC0 * 0.044715

def unpack4(a, u, lo, hi):
    a(f'v_lshlrev_b32 v{u[0]}, 16, v{lo}')
    a(f'v_and_b32 v{u[1]}, 0xffff0000, v{lo}')
    a(f'v_lshlrev_b32 v{u[2]}, 16, v{hi}')
    a(f'v_and_b32 v{u[3]}, 0xffff0000, v{hi}')


def loader_loop(a, NST, NSLOT, per, issue, P=3, extra=None, nextra=0):
    nxt = 0
    ex = 0
    def do_issue():
        nonlocal nxt, ex
        issue(nxt); nxt += 1
        if nxt == NST and extra:
            extra(); ex = nextra
    for _ in range(min(P, NSLOT, NST)):
        do_issue()
    for st in range(NST):
        a(f's_waitcnt vmcnt({per*(nxt-1-st) + ex})')
        a('s_barrier')
        lim = min(NST-1, st-1+NSLOT if st >= 1 else NSLOT-1)
        for _ in range(2):
            if nxt <= lim: do_issue()
    a('s_endpgm')

def compute_loop(a, NST, reads, mfmas, nreads, stampf=None):
    for st in range(NST):
        a('s_barrier')
        if stampf: stampf(st)
        reads(st, 0)
        if st > 0: mfmas(1)
        reads(st, 1)
        a(f's_waitcnt lgkmcnt({nreads})')
        mfmas(0)
        a('s_waitcnt lgkmcnt(0)')
    mfmas(1)
    a('s_nop 7')
    a('s_nop 7')

def dma(a, voff, srdn, soff, m0base, m0imm):
    a(f's_add_u32 m0, {m0base}, {m0imm}')
    a('s_nop 0')
    a(f'buffer_load_dwordx4 v{voff}, s[{srdn}:{srdn+3}], {soff} offen lds')

K1_SLOTS = 5
def gen_k1(a):
    name = 'k1_kernel'
    NS, NST = K1_SLOTS, 7
    kernel_head(a, name, 224)
    lane_setup(a)
    a("""
    s_and_b32 s3, s2, 7
    s_lshr_b32 s4, s2, 3
    s_and_b32 s5, s3, 3
    s_lshl_b32 s5, s5, 2
    s_and_b32 s6, s4, 3
    s_add_u32 s5, s5, s6          ; rb 0..15
    s_lshr_b32 s6, s3, 2
    s_mul_i32 s6, s6, 7
    s_lshr_b32 s7, s4, 2
    s_add_u32 s6, s6, s7          ; cb 0..13
    s_cmp_ge_u32 s8, 8
    s_cbranch_scc1 k1_loader
    s_and_b32 s9, s8, 3           ; mw
    s_lshr_b32 s10, s8, 2         ; nw
    """)
    VO, VC0 = 3, 4
    T0, T1, T2 = 9, 10, 11
    AAD, BAD = 12, 18
    FA, FB = 32, 48
    ACC = 80
    NV = 112
    a('s_lshl_b32 s12, s9, 12')
    a(f'v_lshrrev_b32 v{T0}, 1, v1')
    a(f'v_xor_b32 v{T0}, v{T0}, v2')
    a(f'v_lshlrev_b32 v{T1}, 7, v1')
    a(f'v_add_u32 v{T1}, s12, v{T1}')
    a(f'v_lshl_add_u32 v{AAD}, v{T0}, 4, v{T1}')
    a(f'v_xor_b32 v{AAD+1}, 64, v{AAD}')
    a(f'v_lshrrev_b32 v{T0}, 2, v1')
    a(f'v_and_b32 v{T1}, 1, v2')
    a(f'v_lshl_add_u32 v{T1}, v{T1}, 2, v{T0}')
    a(f'v_lshl_add_u32 v{T0}, v2, 3, v{T0}')
    a(f'v_lshlrev_b32 v{T0}, 8, v{T0}')
    a(f'v_and_b32 v{T2}, 3, v1')
    a(f'v_lshl_add_u32 v{T0}, v{T2}, 3, v{T0}')
    a(f'v_add_u32 v{T0}, 16384, v{T0}')
    a('s_lshl_b32 s12, s10, 2')
    for j in range(4):
        a(f's_add_u32 s13, s12, {j}')
        a(f'v_xor_b32 v{T2}, s13, v{T1}')
        a(f'v_lshl_add_u32 v{BAD+j}, v{T2}, 5, v{T0}')
    for st in (1, 2):
        for i in range(2): a(f'v_add_u32 v{AAD+2*st+i}, {st*65536}, v{AAD+i}')
        for j in range(4): a(f'v_add_u32 v{BAD+4*st+j}, {st*65536}, v{BAD+j}')
    a("""
    s_lshl_b32 s12, s5, 3
    s_lshl_b32 s13, s9, 1
    s_add_u32 s12, s12, s13
    s_mul_i32 s12, s12, 56
    s_cmp_ge_u32 s6, 7
    s_cselect_b32 s13, 7, 0
    s_cselect_b32 s15, 0x400000, 0
    s_sub_u32 s13, s6, s13
    s_lshl_b32 s13, s13, 3
    s_add_u32 s12, s12, s13
    s_lshl_b32 s13, s10, 2
    s_add_u32 s12, s12, s13
    s_lshl_b32 s12, s12, 9
    s_add_u32 s12, s12, s15
    s_movk_i32 s13, 28672
    """)
    a(f'v_lshl_add_u32 v{VO}, v0, 3, s12')
    a(f'v_mov_b32 v{VC0}, {f32bits(GC0):#x}')
    a(f's_mov_b32 s48, {f32bits(GC1):#x}')
    for i in range(32):
        a(f'v_mov_b32 v{ACC+i}, 0')
    a('s_waitcnt lgkmcnt(0)')
    srd(a, 40, 30, 0x800000)
    stamp_init(a, 0, 8)
    a('s_cmp_ge_u32 s6, 7')
    a('s_cbranch_scc1 k1_z2')
    def reads(st, uu):
        slot = st % NS
        sset, soff = slot >> 1, (slot & 1)*32768
        for mt in range(2):
            a(f'ds_read_b128 {vr(FA+uu*8+mt*4,4)}, v{AAD+2*sset+uu} offset:{soff+mt*2048}')
        for j in range(4):
            for h in range(2):
                a(f'ds_read_b64_tr_b16 {vr(FB+uu*16+j*4+h*2,2)}, v{BAD+4*sset+j} offset:{soff+uu*8192+h*1024}')
    for zhalf in range(2):
        if zhalf: a.label('k1_z2')
        def mfmas(buf):
            for j in range(4):
                for mt in range(2):
                    c = ACC + (j*2+mt)*4
                    fb, fa = vr(FB+buf*16+j*4,4), vr(FA+buf*8+mt*4,4)
                    if zhalf == 0:
                        a(f'v_mfma_f32_16x16x32_bf16 {vr(c,4)}, {fb}, {fa}, {vr(c,4)}')
                    else:
                        a(f'v_mfma_f32_16x16x32_bf16 {vr(c,4)}, {fa}, {fb}, {vr(c,4)}')
        compute_loop(a, NST, reads, mfmas, 10, (lambda st: stamp(a, 2+st)) if zhalf == 0 else None)
        if zhalf == 0: stamp(a, 9)
        T = FA
        for j in range(4):
            for mt in range(2):
                c = ACC + (j*2+mt)*4
                u = [T+0, T+1, T+2, T+3]
                w = [T+4, T+5, T+6, T+7]
                p = T+8 + ((j*2+mt) & 3)*2
                a(f'v_cvt_pk_bf16_f32 v{w[0]}, v{c}, v{c+1}')
                a(f'v_cvt_pk_bf16_f32 v{w[1]}, v{c+2}, v{c+3}')
                unpack4(a, u, w[0], w[1])
                for i in range(4): a(f'v_mul_f32 v{w[i]}, v{u[i]}, v{u[i]}')
                for i in range(4): a(f'v_fma_f32 v{w[i]}, v{w[i]}, s48, v{VC0}')
                for i in range(4): a(f'v_mul_f32 v{w[i]}, v{w[i]}, v{u[i]}')
                for i in range(4): a(f'v_exp_f32 v{w[i]}, v{w[i]}')
                for i in range(4): a(f'v_add_f32 v{w[i]}, 1.0, v{w[i]}')
                for i in range(4): a(f'v_rcp_f32 v{w[i]}, v{w[i]}')
                for i in range(4): a(f'v_mul_f32 v{w[i]}, v{w[i]}, v{u[i]}')
                a(f'v_cvt_pk_bf16_f32 v{p}, v{w[0]}, v{w[1]}')
                a(f'v_cvt_pk_bf16_f32 v{p+1}, v{w[2]}, v{w[3]}')
                so = 's13' if mt else '0'
                a(f'buffer_store_dwordx2 {vr(p,2)}, v{VO}, s[40:43], {so} offen offset:{j*512}')
        if zhalf == 0:
            stamp(a, 10)
            stamp_flush(a, 11)
        a('s_endpgm')
    a.label('k1_loader')
    DA, DB = 4, 8
    T0, T1, T2 = 12, 13, 14
    a('s_sub_u32 s9, s8, 8')
    a('s_lshl_b32 s11, s5, 7')
    a('s_lshl_b32 s12, s9, 5')
    a('s_add_u32 s11, s11, s12')
    for e in range(4):
        a(f'v_lshrrev_b32 v{T0}, 3, v0')
        a(f'v_add_u32 v{T0}, {8*e}, v{T0}')
        a(f'v_add_u32 v{T0}, s11, v{T0}')
        a(f'v_mul_u32_u24 v{T0}, 896, v{T0}')
        a(f'v_add_u32 v{T1}, {4*(e&1)}, v2')
        a(f'v_and_b32 v{T2}, 7, v0')
        a(f'v_xor_b32 v{T1}, v{T1}, v{T2}')
        a(f'v_lshl_add_u32 v{DA+e}, v{T1}, 4, v{T0}')
    a('s_lshl_b32 s13, s9, 4')
    a('s_lshl_b32 s14, s6, 8')
    for e in range(4):
        a(f'v_add_u32 v{T0}, {4*e}, v2')
        a(f'v_add_u32 v{T0}, s13, v{T0}')
        a(f'v_mul_u32_u24 v{T0}, 3584, v{T0}')
        a(f'v_or_b32 v{T1}, {((e>>1)&1)<<2}, v2')
        a(f'v_lshrrev_b32 v{T2}, 1, v1')
        a(f'v_xor_b32 v{T1}, v{T1}, v{T2}')
        a(f'v_and_b32 v{T2}, 1, v0')
        a(f'v_lshl_add_u32 v{T1}, v{T1}, 1, v{T2}')
        a(f'v_lshl_add_u32 v{T0}, v{T1}, 4, v{T0}')
        a(f'v_add_u32 v{DB+e}, s14, v{T0}')
    a('s_lshl_b32 s49, s9, 12')
    a('s_waitcnt lgkmcnt(0)')
    srd(a, 32, 16, S*D*2)
    srd(a, 36, 18, D*F*2)
    def issue(st):
        slot = st % NS
        a(f's_movk_i32 s50, {st*128}')
        a(f's_mov_b32 s51, {st*64*3584}')
        for e in range(4):
            dma(a, DA+e, 32, 's50', 's49', slot*32768 + e*1024)
            dma(a, DB+e, 36, 's51', 's49', slot*32768 + 16384 + e*1024)
    def extra():
        srd(a, 40, 20, S*S*2)
        srd(a, 44, 24, FH*D*2)
        a('s_lshl_b32 s52, s2, 2')
        a('s_add_u32 s52, s52, s9')
        a('s_lshl_b32 s53, s52, 10')
        a('s_mul_i32 s52, s52, 10240')
        a('v_lshlrev_b32 v3, 4, v0')
        for i in range(10):
            if i % 4 == 0 and i: a('s_add_u32 s52, s52, 4096')
            a(f'buffer_load_dwordx4 {vr(16+4*i,4)}, v3, s[40:43], s52 offen offset:{(i%4)*1024}')
        a(f'buffer_load_dwordx4 {vr(56,4)}, v3, s[44:47], s53 offen')
    loader_loop(a, NST, NS, 8, issue, extra=extra, nextra=11)
    kernel_tail(a, name)
    return descriptor(name, NV)

def ror_sum(a, regs):
    for sh in (8, 4, 2, 1):
        a('s_nop 1')
        for v in regs:
            a(f'v_add_f32_dpp v{v}, v{v}, v{v} row_ror:{sh} row_mask:0xf bank_mask:0xf')

def rbf(a, v):
    a(f'v_cvt_pk_bf16_f32 v{v}, v{v}, v{v}')
    a(f'v_lshlrev_b32 v{v}, 16, v{v}')

def gen_k2(a):
    name = 'k2_kernel'
    kernel_head(a, name, 256)
    lane_setup(a)
    a('s_cmp_ge_u32 s2, 128')
    a('s_cbranch_scc1 k2_pf')
    VI, VOUT, VL = 3, 4, 5
    RAW, X, SM, M2, MU, RS, SD, TT = 8, 24, 52, 56, 60, 64, 68, 72
    ST = 80
    a('''
    s_mul_i32 s3, s2, 56
    s_mul_i32 s4, s8, 7
    s_add_u32 s3, s3, s4
    s_lshl_b32 s3, s3, 9          ; (R*56 + 7w)*512
    s_lshl_b32 s5, s4, 16         ; 7w * 64 * 1024
    s_lshr_b32 s6, s2, 1
    s_lshl_b32 s6, s6, 10         ; kblk*1024
    s_add_u32 s5, s5, s6
    s_and_b32 s6, s2, 1
    s_lshl_b32 s6, s6, 9          ; 2(R&1)*16*16
    s_add_u32 s5, s5, s6
    s_mov_b32 s7, 0x10000
    ''')
    a(f'v_lshl_add_u32 v{VI}, v0, 3, s3')
    a(f'v_lshrrev_b32 v{VOUT}, 1, v2')
    a(f'v_lshl_add_u32 v{VOUT}, v{VOUT}, 4, v1')
    a(f'v_lshlrev_b32 v{VOUT}, 4, v{VOUT}')
    a(f'v_and_b32 v{VL}, 1, v2')
    a(f'v_lshl_add_u32 v{VOUT}, v{VL}, 3, v{VOUT}')
    a(f'v_add_u32 v{VOUT}, s5, v{VOUT}')
    a('s_waitcnt lgkmcnt(0)')
    srd(a, 32, 30, ZBYTES, WS_Z2R)
    srd(a, 36, 30, ZBYTES, WS_Z2N)
    for j in range(7):
        a(f'buffer_load_dwordx2 {vr(RAW+2*j,2)}, v{VI}, s[32:35], 0 offen offset:{j*512}')
    a('s_lshl_b32 s9, s8, 3')
    a(f'v_lshlrev_b32 v{VL}, 8, v2')
    a(f'v_add_u32 v6, s9, v{VL}')
    a('v_cmp_eq_u32 s[52:53], 0, v1')
    a('s_waitcnt vmcnt(0)')
    for j in range(7):
        unpack4(a, [X+4*j+r for r in range(4)], RAW+2*j, RAW+2*j+1)
    for r in range(4):
        a(f'v_add_f32 v{SM+r}, v{X+r}, v{X+4+r}')
        for j in range(2, 7):
            a(f'v_add_f32 v{SM+r}, v{SM+r}, v{X+4*j+r}')
    ror_sum(a, [SM+r for r in range(4)])
    a(f's_mov_b32 s10, {f32bits(1.0/112):#x}')
    for r in range(4):
        a(f'v_mul_f32 v{SM+r}, s10, v{SM+r}')
    for r in range(4):
        a(f'v_sub_f32 v{TT}, v{X+r}, v{SM+r}')
        a(f'v_mul_f32 v{M2+r}, v{TT}, v{TT}')
        for j in range(1, 7):
            a(f'v_sub_f32 v{TT}, v{X+4*j+r}, v{SM+r}')
            a(f'v_fmac_f32 v{M2+r}, v{TT}, v{TT}')
    ror_sum(a, [M2+r for r in range(4)])
    for r in range(4):
        a(f'v_mov_b32 v{MU+2*r}, v{SM+r}')
        a(f'v_mov_b32 v{MU+2*r+1}, v{M2+r}')
    a('s_mov_b64 exec, s[52:53]')
    for r in range(4):
        a(f'ds_write_b64 v6, {vr(MU+2*r,2)} offset:{r*64}')
    a('s_mov_b64 exec, -1')
    a('s_waitcnt lgkmcnt(0)')
    a('s_barrier')
    for r in range(4):
        for q in range(4):
            a(f'ds_read_b128 {vr(ST+16*r+4*q,4)}, v{VL} offset:{r*64+q*16}')
    a('s_waitcnt lgkmcnt(0)')
    a(f's_mov_b32 s10, {f32bits(0.125):#x}')
    a(f's_mov_b32 s11, {f32bits(112.0):#x}')
    a(f's_mov_b32 s12, {f32bits(1.0/896):#x}')
    for r in range(4):
        b = ST+16*r
        a(f'v_add_f32 v{MU+r}, v{b}, v{b+2}')
        for w in range(2, 8):
            a(f'v_add_f32 v{MU+r}, v{MU+r}, v{b+2*w}')
        a(f'v_mul_f32 v{MU+r}, s10, v{MU+r}')
        a(f'v_add_f32 v{RS+r}, v{b+1}, v{b+3}')
        for w in range(2, 8):
            a(f'v_add_f32 v{RS+r}, v{RS+r}, v{b+2*w+1}')
        a(f'v_sub_f32 v{TT}, v{b}, v{MU+r}')
        a(f'v_mul_f32 v{TT+1}, v{TT}, v{TT}')
        for w in range(1, 8):
            a(f'v_sub_f32 v{TT}, v{b+2*w}, v{MU+r}')
            a(f'v_fmac_f32 v{TT+1}, v{TT}, v{TT}')
        a(f'v_fma_f32 v{RS+r}, v{TT+1}, s11, v{RS+r}')
        a(f'v_mul_f32 v{SD+r}, s12, v{RS+r}')
    for r in range(4):
        rbf(a, MU+r)
        rbf(a, SD+r)
        a(f'v_add_f32 v{SD+r}, {f32bits(1e-5):#x}, v{SD+r}')
        rbf(a, SD+r)
        a(f'v_sqrt_f32 v{SD+r}, v{SD+r}')
    a('s_nop 0')
    for r in range(4):
        rbf(a, SD+r)
        a(f'v_rcp_f32 v{RS+r}, v{SD+r}')
    Y = ST
    for j in range(7):
        for r in range(4):
            a(f'v_sub_f32 v{Y+4*j+r}, v{X+4*j+r}, v{MU+r}')
        a(f'v_cvt_pk_bf16_f32 v{TT}, v{Y+4*j}, v{Y+4*j+1}')
        a(f'v_cvt_pk_bf16_f32 v{TT+1}, v{Y+4*j+2}, v{Y+4*j+3}')
        unpack4(a, [Y+4*j+r for r in range(4)], TT, TT+1)
        for r in range(4):
            x, y = X+4*j+r, Y+4*j+r
            a(f'v_mul_f32 v{x}, v{y}, v{RS+r}')
            a(f'v_fma_f32 v{y}, -v{x}, v{SD+r}, v{y}')
            a(f'v_fmac_f32 v{x}, v{y}, v{RS+r}')
        a(f'v_cvt_pk_bf16_f32 v{RAW+2*j}, v{X+4*j}, v{X+4*j+1}')
        a(f'v_cvt_pk_bf16_f32 v{RAW+2*j+1}, v{X+4*j+2}, v{X+4*j+3}')
        if j: a(f's_mov_b32 s13, {j*0x10000:#x}')
        a(f'buffer_store_dwordx2 {vr(RAW+2*j,2)}, v{VOUT}, s[36:39], {"s13" if j else "0"} offen')
    a('s_endpgm')
    a.label('k2_pf')
    a('s_and_b32 s3, s2, 3')
    a('s_lshl_b32 s3, s3, 21')
    a('s_sub_u32 s4, s2, 128')
    a('s_lshr_b32 s4, s4, 3')
    a('s_lshl_b32 s4, s4, 17')
    a('s_add_u32 s3, s3, s4')
    a('s_lshl_b32 s4, s8, 14')
    a('s_add_u32 s3, s3, s4')
    a('v_lshlrev_b32 v3, 4, v0')
    a('s_waitcnt lgkmcnt(0)')
    srd(a, 32, 20, S*S*2)
    for i in range(16):
        if i % 4 == 0 and i: a('s_add_u32 s3, s3, 4096')
        a(f'buffer_load_dwordx4 {vr(8+4*i,4)}, v3, s[32:35], s3 offen offset:{(i%4)*1024}')
    a('s_waitcnt vmcnt(0)')
    kernel_tail(a, name)
    return descriptor(name, 144)


K3_SLOTS, K3_SLOT = 7, 22528
def gen_k3(a):
    name = 'k3_kernel'
    kernel_head(a, name, 256)
    lane_setup(a)
    a("""
    s_and_b32 s3, s2, 7
    s_lshr_b32 s4, s2, 3
    s_and_b32 s5, s3, 3
    s_lshl_b32 s5, s5, 3
    s_and_b32 s6, s4, 7
    s_add_u32 s5, s5, s6          ; tb 0..31
    s_lshr_b32 s6, s3, 2
    s_lshl_b32 s6, s6, 2
    s_lshr_b32 s7, s4, 3
    s_add_u32 s6, s6, s7          ; fb 0..7
    s_mul_i32 s9, s6, 7
    s_cmp_ge_u32 s8, 4
    s_cbranch_scc1 k3_loader
    s_lshl_b32 s10, s8, 1
    s_add_u32 s9, s9, s10
    """)
    NST, NS, SL = 32, K3_SLOTS, K3_SLOT
    VZ, VH, VBI = 4, 5, 6
    T0, T1, T2 = 10, 11, 12
    AAD, BAD = 13, 21
    FA, FB = 28, 60
    ACC = 76
    Z1 = 108
    TE = 28
    NV = 128
    a(f'v_lshrrev_b32 v{T0}, 1, v1')
    a(f'v_xor_b32 v{T0}, v{T0}, v2')
    a(f'v_lshlrev_b32 v{T1}, 7, v1')
    a(f'v_lshl_add_u32 v{AAD}, v{T0}, 4, v{T1}')
    a(f'v_xor_b32 v{AAD+1}, 64, v{AAD}')
    a('s_lshl_b32 s12, s8, 12')
    a('s_add_u32 s12, s12, 8192')
    a(f'v_lshl_add_u32 v{BAD}, v0, 4, s12')
    for k in range(1, 4):
        a(f'v_add_u32 v{AAD+2*k}, {2*k*SL}, v{AAD}')
        a(f'v_add_u32 v{AAD+2*k+1}, {2*k*SL}, v{AAD+1}')
        a(f'v_add_u32 v{BAD+k}, {2*k*SL}, v{BAD}')
    a('s_lshl_b32 s12, s5, 2')
    a('s_mul_i32 s13, s12, 56')
    a('s_add_u32 s13, s13, s9')
    a('s_lshl_b32 s13, s13, 9')
    a(f'v_lshl_add_u32 v{VZ}, v0, 3, s13')
    a(f'v_lshrrev_b32 v{VH}, 1, v2')
    a(f'v_lshl_add_u32 v{VH}, v{VH}, 4, v1')
    a(f'v_lshlrev_b32 v{VH}, 4, v{VH}')
    a(f'v_and_b32 v{T0}, 1, v2')
    a(f'v_lshl_add_u32 v{VH}, v{T0}, 3, v{VH}')
    a('s_mul_i32 s13, s12, 28672')
    a('s_lshl_b32 s14, s9, 9')
    a('s_add_u32 s13, s13, s14')
    a(f'v_add_u32 v{VH}, s13, v{VH}')
    a('s_lshl_b32 s12, s5, 6')
    a(f'v_add_u32 v{T0}, s12, v1')
    a(f'v_lshlrev_b32 v{T0}, 1, v{T0}')
    for i in range(32):
        a(f'v_mov_b32 v{ACC+i}, 0')
    a('s_waitcnt lgkmcnt(0)')
    srd(a, 40, 30, ZBYTES, WS_Z1)
    srd(a, 44, 30, ZBYTES, WS_H)
    srd(a, 56, 22, S*2)
    stamp_init(a, 2, 4)
    for mt in range(4):
        a(f'buffer_load_ushort v{VBI+mt}, v{T0}, s[56:59], 0 offen offset:{mt*32}')
    a('s_cmp_eq_u32 s8, 3')
    a('s_cbranch_scc1 k3_w3')
    for NT in (2, 1):
        if NT == 1: a.label('k3_w3')
        for mt in range(4):
            a(f's_mov_b32 s13, {mt*28672}')
            for jj in range(NT):
                a(f'buffer_load_dwordx2 {vr(Z1+(jj*4+mt)*2,2)}, v{VZ}, s[40:43], s13 offen offset:{jj*512}')
        def reads(st, u):
            slot = st % NS
            sset, soff = slot >> 1, (slot & 1)*SL
            for mt in range(4):
                a(f'ds_read_b128 {vr(FA+u*16+mt*4,4)}, v{AAD+2*sset+u} offset:{soff+mt*2048}')
            for jj in range(NT):
                a(f'ds_read_b128 {vr(FB+u*8+jj*4,4)}, v{BAD+sset} offset:{soff+(jj*2+u)*1024}')
        def mfmas(buf):
            for jj in range(NT):
                for mt in range(4):
                    c = ACC + (jj*4+mt)*4
                    a(f'v_mfma_f32_16x16x32_bf16 {vr(c,4)}, {vr(FB+buf*8+jj*4,4)}, {vr(FA+buf*16+mt*4,4)}, {vr(c,4)}')
        compute_loop(a, NST, reads, mfmas, 4+NT, (lambda st: stamp(a, 2+st//2) if st % 2 == 0 else None) if NT == 2 else None)
        if NT == 2: stamp(a, 18)
        a('s_waitcnt vmcnt(0)')
        for mt in range(4):
            a(f'v_lshlrev_b32 v{VBI+mt}, 16, v{VBI+mt}')
        for jj in range(NT):
            for mt in range(4):
                c = ACC + (jj*4+mt)*4
                u = [TE+0, TE+1, TE+2, TE+3]
                w = [TE+4, TE+5]
                z = [TE+6, TE+7, TE+8, TE+9]
                p = TE+10 + (mt & 3)*2
                zz = Z1+(jj*4+mt)*2
                a(f'v_cvt_pk_bf16_f32 v{w[0]}, v{c}, v{c+1}')
                a(f'v_cvt_pk_bf16_f32 v{w[1]}, v{c+2}, v{c+3}')
                unpack4(a, u, w[0], w[1])
                for i in range(4): a(f'v_add_f32 v{u[i]}, v{u[i]}, v{VBI+mt}')
                a(f'v_cvt_pk_bf16_f32 v{w[0]}, v{u[0]}, v{u[1]}')
                a(f'v_cvt_pk_bf16_f32 v{w[1]}, v{u[2]}, v{u[3]}')
                unpack4(a, u, w[0], w[1])
                unpack4(a, z, zz, zz+1)
                for i in range(4): a(f'v_mul_f32 v{u[i]}, v{u[i]}, v{z[i]}')
                a(f'v_cvt_pk_bf16_f32 v{p}, v{u[0]}, v{u[1]}')
                a(f'v_cvt_pk_bf16_f32 v{p+1}, v{u[2]}, v{u[3]}')
                a(f's_mov_b32 s13, {mt*28672}')
                a(f'buffer_store_dwordx2 {vr(p,2)}, v{VH}, s[44:47], s13 offen offset:{jj*512}')
        if NT == 2:
            stamp(a, 19)
            stamp_flush(a, 20)
        a('s_endpgm')
    a.label('k3_loader')
    DA, DB = 4, 6
    T0, T1, T2 = 8, 9, 10
    a('s_sub_u32 s10, s8, 4')
    a('s_lshl_b32 s11, s5, 6')
    a('s_lshl_b32 s12, s10, 4')
    a('s_add_u32 s11, s11, s12')
    for e in range(2):
        a(f'v_lshrrev_b32 v{T0}, 3, v0')
        a(f'v_add_u32 v{T0}, {8*e}, v{T0}')
        a(f'v_add_u32 v{T0}, s11, v{T0}')
        a(f'v_lshlrev_b32 v{T0}, 12, v{T0}')
        a(f'v_add_u32 v{T1}, {4*e}, v2')
        a(f'v_and_b32 v{T2}, 7, v0')
        a(f'v_xor_b32 v{T1}, v{T1}, v{T2}')
        a(f'v_lshl_add_u32 v{DA+e}, v{T1}, 4, v{T0}')
    a('s_lshl_b32 s12, s9, 16')
    a(f'v_lshl_add_u32 v{DB}, v0, 4, s12')
    a('s_waitcnt lgkmcnt(0)')
    srd(a, 32, 20, S*S*2)
    srd(a, 36, 30, ZBYTES, WS_Z2N)
    lists = ([0,1,2,3], [4,5,6,7], [8,9,10], [11,12,13])
    for q in range(1, 4):
        a(f's_cmp_eq_u32 s10, {q}')
        a(f's_cbranch_scc1 k3_ld{q}')
    for q in range(4):
        if q: a.label(f'k3_ld{q}')
        def issue(st):
            slot = st % NS
            a(f's_movk_i32 s50, {st*128}')
            for e in range(2):
                dma(a, DA+e, 32, 's50', '0', slot*SL + (2*q+e)*1024)
            for idx in lists[q]:
                a(f's_mov_b32 s51, {(idx>>1)*65536 + (2*st + (idx&1))*1024}')
                dma(a, DB, 36, 's51', '0', slot*SL + 8192 + idx*1024)
        loader_loop(a, NST, NS, 2+len(lists[q]), issue)
    kernel_tail(a, name)
    return descriptor(name, NV)

K4_SLOTS = 10
def gen_k4(a):
    name = 'k4_kernel'
    NST, NS = 14, K4_SLOTS
    kernel_head(a, name, 224)
    lane_setup(a)
    a("""
    s_and_b32 s3, s2, 7
    s_lshr_b32 s4, s2, 3
    s_lshl_b32 s5, s3, 2
    s_and_b32 s6, s4, 3
    s_add_u32 s5, s5, s6          ; tb 0..31
    s_lshr_b32 s6, s4, 2          ; db 0..6
    s_lshl_b32 s9, s6, 7
    s_cmp_ge_u32 s8, 4
    s_cbranch_scc1 k4_loader
    s_lshl_b32 s10, s5, 6
    s_lshl_b32 s11, s8, 4
    s_add_u32 s10, s10, s11
    """)
    VO = 4
    AAD, BAD = 5, 8
    t0, t1, t2 = 20, 21, 22
    FA, FB, ACC = 24, 32, 64
    NV = 80
    a(f'v_add_u32 v{VO}, s10, v1')
    a(f'v_mul_u32_u24 v{VO}, 896, v{VO}')
    a(f'v_lshl_add_u32 v{VO}, v2, 3, v{VO}')
    a(f'v_add_u32 v{VO}, s9, v{VO}')
    a('s_lshl_b32 s11, s8, 11')
    a(f'v_lshl_add_u32 v{AAD}, v0, 4, s11')
    a(f'v_lshrrev_b32 v{t0}, 2, v1')
    a(f'v_lshl_add_u32 v{t0}, v2, 2, v{t0}')
    a(f'v_bfe_u32 v{t1}, v{t0}, 1, 2')
    a(f'v_and_b32 v{t2}, 3, v1')
    a(f'v_lshlrev_b32 v{t2}, 3, v{t2}')
    a(f'v_lshl_add_u32 v{t2}, v{t0}, 7, v{t2}')
    a(f'v_add_u32 v{t2}, 8192, v{t2}')
    for j in range(4):
        a(f'v_xor_b32 v{t0}, {j}, v{t1}')
        a(f'v_lshl_add_u32 v{BAD+j}, v{t0}, 5, v{t2}')
    for k in (1, 2):
        a(f'v_add_u32 v{AAD+k}, {k*65536}, v{AAD}')
        for j in range(4): a(f'v_add_u32 v{BAD+4*k+j}, {k*65536}, v{BAD+j}')
    for i in range(16):
        a(f'v_mov_b32 v{ACC+i}, 0')
    a('s_waitcnt lgkmcnt(0)')
    srd(a, 40, 26, S*D*2)
    stamp_init(a, 3, 4)
    def reads(st, u):
        slot = st % NS
        sset, soff = slot >> 2, (slot & 3)*16384
        a(f'ds_read_b128 {vr(FA+u*4,4)}, v{AAD+sset} offset:{soff+u*1024}')
        for j in range(4):
            for h in range(2):
                a(f'ds_read_b64_tr_b16 {vr(FB+u*16+j*4+h*2,2)}, v{BAD+4*sset+j} offset:{soff+u*4096+h*2048}')
    def mfmas(buf):
        for j in range(4):
            c = ACC + j*4
            a(f'v_mfma_f32_16x16x32_bf16 {vr(c,4)}, {vr(FB+buf*16+j*4,4)}, {vr(FA+buf*4,4)}, {vr(c,4)}')
    compute_loop(a, NST, reads, mfmas, 9, lambda st: stamp(a, 2+st))
    stamp(a, 16)
    for j in range(4):
        c = ACC + j*4
        p = FA + j*2
        a(f'v_cvt_pk_bf16_f32 v{p}, v{c}, v{c+1}')
        a(f'v_cvt_pk_bf16_f32 v{p+1}, v{c+2}, v{c+3}')
        a(f'buffer_store_dwordx2 {vr(p,2)}, v{VO}, s[40:43], 0 offen offset:{j*32}')
    stamp(a, 17)
    stamp_flush(a, 18)
    a('s_endpgm')
    a.label('k4_loader')
    DA, DB = 4, 5
    t0, t1, t2 = 6, 7, 8
    a('s_sub_u32 s10, s8, 4')
    a('s_lshl_b32 s11, s5, 2')
    a('s_add_u32 s11, s11, s10')
    a('s_mul_i32 s11, s11, 28672')
    a(f'v_lshl_add_u32 v{DA}, v0, 4, s11')
    a('s_lshl_b32 s12, s10, 3')
    a(f'v_lshrrev_b32 v{t0}, 3, v0')
    a(f'v_add_u32 v{t0}, s12, v{t0}')
    a(f'v_bfe_u32 v{t1}, v{t0}, 1, 2')
    a(f'v_bfe_u32 v{t2}, v0, 1, 2')
    a(f'v_xor_b32 v{t1}, v{t1}, v{t2}')
    a(f'v_and_b32 v{t2}, 1, v0')
    a(f'v_lshl_add_u32 v{t1}, v{t1}, 1, v{t2}')
    a(f'v_lshlrev_b32 v{t1}, 4, v{t1}')
    a(f'v_bfe_u32 v{t2}, v{t0}, 2, 2')
    a(f'v_lshlrev_b32 v{t2}, 3, v{t2}')
    a(f'v_and_b32 v{DB}, 3, v{t0}')
    a(f'v_add_u32 v{t2}, v{t2}, v{DB}')
    a(f'v_lshrrev_b32 v{t0}, 4, v{t0}')
    a(f'v_lshl_add_u32 v{t2}, v{t0}, 2, v{t2}')
    a(f'v_mul_u32_u24 v{t2}, 896, v{t2}')
    a(f'v_add3_u32 v{DB}, v{t2}, v{t1}, s9')
    a('s_lshl_b32 s48, s10, 11')
    a('s_lshl_b32 s49, s10, 10')
    a('s_waitcnt lgkmcnt(0)')
    srd(a, 32, 30, ZBYTES, WS_H)
    srd(a, 36, 24, FH*D*2)
    def issue(st):
        slot = st % NS
        for kb in range(2):
            a(f's_movk_i32 s50, {st*2048 + kb*1024}')
            dma(a, DA, 32, 's50', 's48', slot*16384 + kb*1024)
            a(f's_mov_b32 s51, {(64*st + 32*kb)*896}')
            dma(a, DB, 36, 's51', 's49', slot*16384 + 8192 + kb*4096)
    loader_loop(a, NST, NS, 4, issue)
    kernel_tail(a, name)
    return descriptor(name, NV)

HEADER = open('standalone__mixer_gmlp__prompt.s.ref').read().split('; Override')[0]

def main():
    global STAMP
    if '--stamp' in sys.argv:
        STAMP = True; sys.argv.remove('--stamp')
    a = Asm()
    d = [gen_k1(a), gen_k2(a), gen_k3(a), gen_k4(a)]
    out = HEADER
    out += f'; @launch kernel=k1_kernel grid=(224,1,1) block=(768,1,1) lds={K1_SLOTS*32768}\n'
    out += '; @launch kernel=k2_kernel grid=(256,1,1) block=(512,1,1) lds=1024\n'
    out += f'; @launch kernel=k3_kernel grid=(256,1,1) block=(512,1,1) lds={K3_SLOTS*K3_SLOT}\n'
    out += f'; @launch kernel=k4_kernel grid=(224,1,1) block=(512,1,1) lds={K4_SLOTS*16384}\n'
    out += '.amdgcn_target "amdgcn-amd-amdhsa--gfx950"\n.text\n'
    out += a.text()
    out += '.section .rodata,"a"\n'
    for x in d:
        out += '.p2align 6\n' + x
    path = sys.argv[1] if len(sys.argv) > 1 else 'standalone__mixer_gmlp__prompt.s'
    open(path, 'w').write(out)

main()
```
